```python
import torch

def _softmax(x, axis=-1):
    return torch.softmax(x, dim=axis)
def _gelu(x):
    return torch.nn.functional.gelu(x, approximate="tanh")
def _silu(x):
    return torch.nn.functional.silu(x)
def _sigmoid(x):
    return torch.sigmoid(x)
def _layernorm(x, axis=-1, eps=1e-5):
    m = x.mean(dim=axis, keepdim=True)
    v = x.var(dim=axis, keepdim=True, unbiased=False)
    return (x - m) / torch.sqrt(v + eps)
def _scatter_add(tgt, idx, src, axis=0):
    return tgt.clone().index_add_(axis, idx, src)
def _segment_sum(src, seg, n):
    out = torch.zeros((n,) + src.shape[1:], dtype=src.dtype)
    return out.index_add_(0, seg, src)
def _pad(x, pw):
    flat = tuple(v for pair in reversed(pw) for v in pair)
    return torch.nn.functional.pad(x, flat)

kernel_name = 'sequential_preLN__ssm_conv_s4d__dense_activation_squared_relu__prompt'

def setup_inputs():

    _w = (lambda a: (lambda t: t.to(torch.bfloat16) if t.is_floating_point() else t)(torch.as_tensor(a)))
    def _A_setup():
        Bsz, L, D, N = 1, 2048, 576, 128
        return {
            "u": _w((lambda *s: torch.randn(*s, dtype=torch.bfloat16) * 0.05)(Bsz, L, D)),
            "log_A_real": _w((lambda *s: torch.randn(*s, dtype=torch.bfloat16) * 3.2)(D, N) * 0.5),
            "A_imag": _w((lambda *s: torch.randn(*s, dtype=torch.bfloat16) * 0.05)(D, N) * 3.14),
            "C_real": _w((lambda *s: torch.randn(*s, dtype=torch.bfloat16) * 0.1)(D, N) / N ** 0.5),
            "C_imag": _w((lambda *s: torch.randn(*s, dtype=torch.bfloat16) * 0.1)(D, N) / N ** 0.5),
            "log_dt": _w((lambda *s: torch.randn(*s, dtype=torch.bfloat16) * 0.05)(D) * 0.5 - 4.0),
            "D_skip": _w((lambda *s: torch.randn(*s, dtype=torch.bfloat16) * 0.05)(D)),
        }
    _A_in = _A_setup()

    def _B_setup():
        B, S, D, F = 1, 2048, 576, 4608
        return {
            "x": _w((lambda *s: torch.randn(*s, dtype=torch.bfloat16) * 0.05)(B, S, D)),
            "w1": _w((lambda *s: torch.randn(*s, dtype=torch.bfloat16) * 0.05)(D, F)),
            "b1": _w((lambda *s: torch.randn(*s, dtype=torch.bfloat16) * 0.2)(F)),
            "w2": _w((lambda *s: torch.randn(*s, dtype=torch.bfloat16) * 0.05)(F, D)),
            "b2": _w((lambda *s: torch.randn(*s, dtype=torch.bfloat16) * 1.6)(D)),
        }
    _B_in = _B_setup()

    return {
        "A_u": _A_in["u"],
        "A_log_A_real": _A_in["log_A_real"],
        "A_A_imag": _A_in["A_imag"],
        "A_C_real": _A_in["C_real"],
        "A_C_imag": _A_in["C_imag"],
        "A_log_dt": _A_in["log_dt"],
        "A_D_skip": _A_in["D_skip"],
        "B_x": _B_in["x"],
        "B_w1": _B_in["w1"],
        "B_b1": _B_in["b1"],
        "B_w2": _B_in["w2"],
        "B_b2": _B_in["b2"],
    }

def reference(A_u, A_log_A_real, A_A_imag, A_C_real, A_C_imag, A_log_dt, A_D_skip, B_x, B_w1, B_b1, B_w2, B_b2):
    def _A_ref(u, log_A_real, A_imag, C_real, C_imag, log_dt, D_skip):
        L = u.shape[1]
        dt = torch.exp(log_dt)
        A = -torch.exp(log_A_real) + 1j * A_imag
        C = (C_real + 1j * C_imag) * dt[:, None]
        pos = (lambda x, dt: x.to(dt))(torch.arange(L), log_dt.dtype)
        P = torch.exp((A * dt[:, None])[:, :, None] * pos[None, None, :])
        K = 2.0 * torch.einsum("dn,dnl->dl", C, P).real
        L2 = 2 * L
        u_t = (lambda x, *d: x.permute(*d))(u, 0, 2, 1)
        Kf = (lambda x, *a, **k: torch.fft.rfft(x.float(), *a, **k))(K, L2)
        Uf = (lambda x, *a, **k: torch.fft.rfft(x.float(), *a, **k))(u_t, L2)
        y = (lambda x, *a, **k: torch.fft.irfft(x, *a, **k).to(torch.bfloat16))(Uf * Kf[None, :, :], L2)[:, :, :L]
        y = (lambda x, *d: x.permute(*d))(y, 0, 2, 1)
        return y + u * D_skip[None, None, :]

    def _B_ref(x, w1, b1, w2, b2):
        h = torch.einsum("bsd,df->bsf", x, w1) + b1
        zero = torch.zeros_like(h)
        r = torch.where(h > zero, h, zero)
        h = r * r
        out = torch.einsum("bsf,fd->bsd", h, w2) + b2
        return out

    x = A_u
    h = x + _A_ref(_layernorm(x, axis=-1), A_log_A_real, A_A_imag, A_C_real, A_C_imag, A_log_dt, A_D_skip)
    h2 = h + _B_ref(_layernorm(h, axis=-1), B_w1, B_b1, B_w2, B_b2)
    return h2
```

```python
class Em:
    def __init__(self):
        self.L = []
        self.vm = []; self.vm_done = 0
        self.lg = []; self.lg_done = 0
        self.n = 0
    def __call__(self, s):
        for x in s.split("\n"):
            x = x.strip()
            if not x: continue
            self.L.append(x)
            if not x.endswith(":") and not x.startswith((";", ".")): self.n += 1
    def vmem(self, s, tag=None):
        self(s); self.vm.append(tag)
    def lds(self, s, tag=None):
        self(s); self.lg.append(tag)
    def wait(self, vm=None, lg=None):
        parts = []
        if vm is not None:
            tags = vm if isinstance(vm, (list, set)) else [vm]
            idx = max(len(self.vm) - 1 - self.vm[::-1].index(t) for t in tags)
            if idx + 1 > self.vm_done:
                n = min(len(self.vm) - 1 - idx, 63)
                parts.append(f"vmcnt({n})"); self.vm_done = len(self.vm) - n
        if lg is not None:
            tags = lg if isinstance(lg, (list, set)) else [lg]
            idx = max(len(self.lg) - 1 - self.lg[::-1].index(t) for t in tags)
            if idx + 1 > self.lg_done:
                n = min(len(self.lg) - 1 - idx, 15)
                parts.append(f"lgkmcnt({n})"); self.lg_done = len(self.lg) - n
        if parts: self("s_waitcnt " + " ".join(parts))
    def wait_all(self, vm=True, lg=True):
        p = []
        if vm: p.append("vmcnt(0)"); self.vm_done = len(self.vm)
        if lg: p.append("lgkmcnt(0)"); self.lg_done = len(self.lg)
        self("s_waitcnt " + " ".join(p))
    def text(self): return "\n".join(self.L) + "\n"

def kd(name, vgpr, sgpr, accum):
    return f""".p2align 6
.amdhsa_kernel {name}
  .amdhsa_next_free_vgpr {vgpr}
  .amdhsa_next_free_sgpr {sgpr}
  .amdhsa_accum_offset {accum}
  .amdhsa_group_segment_fixed_size 0
  .amdhsa_kernarg_size 120
  .amdhsa_user_sgpr_count 2
  .amdhsa_user_sgpr_kernarg_segment_ptr 1
  .amdhsa_system_sgpr_workgroup_id_x 1
.end_amdhsa_kernel
"""
def vr(b, n=4): return f"v[{b}:{b+n-1}]"
def ar(b, n=4): return f"a[{b}:{b+n-1}]"
```

```python
from layout import *
from emit import *
K1_LDS = 36864
NPK, NKG, NLN = 144, 576, 256
K1_WGS = NPK + NKG + NLN
LOG2E, INV2PI = "0x3fb8aa3b", "0x3e22f983"

def cmul(E, dst, a, w, T):
    E(f"v_pk_mul_f32 {vr(T,2)}, {vr(a,2)}, {vr(w,2)} op_sel:[0,0] op_sel_hi:[0,1]")
    E(f"v_pk_fma_f32 {vr(dst,2)}, {vr(a,2)}, {vr(w,2)}, {vr(T,2)} op_sel:[1,1,0] op_sel_hi:[1,0,1] neg_lo:[1,0,0]")

def gen_k1(opt=None):
    opt = opt or {}
    O = lambda k, d: opt.get(k, d)
    SC = O("k1sc", "sc1")
    E = Em(); name = "prep_kernel"
    sWS = "s[8:11]"; sw = "s3"
    E(f".globl {name}\n.p2align 8\n.type {name},@function\n{name}:")
    E(f"s_cmp_ge_u32 s2, {K1_WGS}\ns_cbranch_scc1 L1_end")
    E("s_load_dwordx16 s[16:31], s[0:1], 0\ns_load_dwordx2 s[4:5], s[0:1], 64\ns_load_dwordx2 s[6:7], s[0:1], 112")
    E(f"v_lshrrev_b32 v1, 6, v0\nv_and_b32 v2, 63, v0\ns_mov_b32 s10, 0x10000000\nv_readfirstlane_b32 {sw}, v1\ns_mov_b32 s11, 0x20000")
    E(f"s_cmp_ge_u32 s2, {NPK + NKG}\ns_cbranch_scc1 L1_ln\ns_cmp_ge_u32 s2, {NPK}\ns_cbranch_scc1 L1_kg")
    E("s_getpc_b64 s[32:33]\nL1_pc:\ns_add_u32 s32, s32, T_w1-L1_pc\ns_addc_u32 s33, s33, 0")
    E("s_and_b32 s34, s2, 15\ns_lshr_b32 s35, s2, 4")
    E(f"s_lshl_b32 s36, s35, 2\ns_add_u32 s36, s36, {sw}\ns_lshl_b32 s36, s36, 6")
    E(f"s_mul_i32 s37, s35, {64*9216}\ns_mul_i32 s38, s34, 576\ns_add_u32 s37, s37, s38")
    for j in range(9):
        E(f"v_add_u32 v3, {256*j}, v0\nv_mul_u32_u24 v4, 1821, v3\nv_lshrrev_b32 v4, 16, v4\nv_mul_u32_u24 v5, {9216-36*16}, v4\nv_lshl_add_u32 v{8+j}, v3, 4, v5")
    E(f"s_lshl_b32 s39, {sw}, 10\ns_mov_b32 s14, {576*4608*2}\ns_mov_b32 s15, 0x20000")
    E("s_waitcnt lgkmcnt(0)\ns_mov_b32 s12, s4\ns_mov_b32 s13, s5\ns_mov_b32 s8, s6\ns_mov_b32 s9, s7")
    for j in range(9):
        E(f"s_add_u32 m0, s39, {j*4096}\ns_nop 0\nbuffer_load_dwordx4 v{8+j}, s[12:15], s37 offen lds")
    E("s_load_dwordx16 s[48:63], s[32:33], s36")
    E(f"v_lshrrev_b32 v3, 4, v2\nv_lshlrev_b32 v3, 3, v3\nv_bfe_u32 v4, v2, 2, 2\nv_add_u32 v3, v3, v4\nv_mul_u32_u24 v3, 576, v3\nv_and_b32 v4, 3, v2\nv_lshl_add_u32 v3, v4, 3, v3")
    E(f"s_lshr_b32 s40, {sw}, 1\ns_mul_i32 s41, s40, {32*576}\ns_and_b32 s42, {sw}, 1\ns_mul_i32 s43, s42, 288\ns_add_u32 s41, s41, s43\nv_add_u32 v3, s41, v3")
    E(f"v_lshlrev_b32 v4, 4, v2\ns_mul_i32 s44, s34, {WP_STRIDE}\ns_add_u32 s44, s44, {WP_OFF}")
    for i in range(4): E(f"v_mov_b32 v{96+i}, 0x3f803f80")
    E("v_lshrrev_b32 v5, 4, v2")
    for i in range(1, 4): E(f"v_cmp_eq_u32 s[{64+2*i}:{65+2*i}], {i}, v5")
    E(f"s_lshl_b32 s45, s35, 1\ns_add_u32 s45, s45, s40\ns_mul_i32 s45, s45, {4608*4}\ns_mul_i32 s46, s34, {288*4}\ns_add_u32 s45, s45, s46\ns_lshl_b32 s43, s43, 1\ns_add_u32 s45, s45, s43\ns_add_u32 s45, s45, {CS_OFF}")
    E("v_lshlrev_b32 v6, 2, v2\nv_cmp_gt_u32 vcc, 16, v2\nv_mov_b32 v7, 0x40000000\ns_nop 1\nv_cndmask_b32 v7, v7, v6, vcc")
    E("s_waitcnt vmcnt(0) lgkmcnt(0)\ns_barrier")
    for t in range(9):
        E.lds(f"ds_read_b64_tr_b16 {vr(20+4*t,2)}, v3 offset:{32*t}", t)
        E.lds(f"ds_read_b64_tr_b16 {vr(22+4*t,2)}, v3 offset:{32*t+4*576}", t)
    for t in range(9):
        E.wait(lg=t)
        E(f"s_add_u32 s47, s44, s{48+t}")
        E(f"buffer_store_dwordx4 {vr(20+4*t)}, v4, {sWS}, s47 offen {SC}")
        E(f"v_mfma_f32_16x16x32_bf16 {vr(56+4*t)}, v[96:99], {vr(20+4*t)}, 0")
    E("s_nop 7")
    for a in range(2):
        for i in range(1, 4): E(f"v_cndmask_b32 v{56+16*a}, v{56+16*a}, v{56+16*a+4*i}, s[{64+2*i}:{65+2*i}]")
        E(f"buffer_store_dword v{56+16*a}, v6, {sWS}, s45 offen offset:{a*256} {SC}")
    E(f"buffer_store_dword v{56+32}, v7, {sWS}, s45 offen offset:512 {SC}")
    E("s_endpgm")

    E("L1_kg:")
    E(f"s_sub_u32 s34, s2, {NPK}")
    E(f"v_and_b32 v3, 127, v0\ns_lshl_b32 s35, s34, 8\nv_lshl_add_u32 v4, v3, 1, s35\ns_lshl_b32 s36, s34, 1\nv_mov_b32 v5, s36")
    E("s_waitcnt lgkmcnt(0)")
    E("global_load_ushort v8, v4, s[18:19]\nglobal_load_ushort v9, v4, s[20:21]\nglobal_load_ushort v12, v5, s[26:27]")
    E("global_load_ushort v10, v4, s[22:23]\nglobal_load_ushort v11, v4, s[24:25]")
    E("s_mov_b32 s8, s6\ns_mov_b32 s9, s7\nv_lshlrev_b32 v3, 2, v3")
    E(f"s_mov_b32 s37, {LOG2E}\ns_mov_b32 s38, {INV2PI}")
    E("s_waitcnt vmcnt(2)")
    E("v_lshlrev_b32 v8, 16, v8\nv_lshlrev_b32 v12, 16, v12\nv_lshlrev_b32 v9, 16, v9")
    E("v_mul_f32 v8, s37, v8\nv_mul_f32 v12, s37, v12\nv_exp_f32 v8, v8\nv_exp_f32 v12, v12\ns_nop 0")
    E("v_cvt_pk_bf16_f32 v8, v8, v12\nv_and_b32 v12, 0xffff0000, v8\nv_lshlrev_b32 v8, 16, v8")
    E("v_mul_f32 v8, v8, v12\nv_mul_f32 v9, v9, v12")
    E("v_mul_f32 v8, s37, v8\nv_mul_f32 v9, s38, v9")
    def cexp(dst, p, t):
        import struct
        ph = hex(struct.unpack('<I', struct.pack('<f', float(p)))[0])
        E(f"v_mul_f32 v{t}, {ph}, v8\nv_mul_f32 v{t+1}, {ph}, v9\nv_exp_f32 v{t}, -v{t}\nv_fract_f32 v{t+1}, v{t+1}")
        E(f"v_cos_f32 v{dst}, v{t+1}\nv_sin_f32 v{dst+1}, v{t+1}\ns_nop 0")
        E(f"v_pk_mul_f32 {vr(dst,2)}, {vr(dst,2)}, {vr(t,2)} op_sel_hi:[1,0]")
    YB = 32 * 528
    E(f"s_cmp_ge_u32 {sw}, 2\ns_cbranch_scc1 L1_kx")
    cexp(20, 8, 14); cexp(24, 128, 16)
    E("v_mov_b32 v22, 1.0\nv_mov_b32 v23, 0")
    def put(row, r, neg, base, t):
        E(f"v_cvt_pk_bf16_f32 v{t}, v{r}, {'-' if neg else ''}v{r+1}\nds_write_b32 v3, v{t} offset:{base + row*528}")
    for k in range(16):
        put(k, 22, 0, YB, 30); put(16 + k, 24, 0, YB, 31)
        if k < 15:
            cmul(E, 22, 22, 20, 26); cmul(E, 24, 24, 20, 28)
    E("s_branch L1_kj")
    E("L1_kx:")
    rowof = {}
    for v, h in enumerate(H0): rowof[h] = krow(0, v)
    for v, h in enumerate(H1): rowof[h] = krow(1, v)
    cexp(20, 1, 14); cexp(32, 256, 16)
    E("s_waitcnt vmcnt(0)\nv_lshlrev_b32 v10, 16, v10\nv_lshlrev_b32 v11, 16, v11\nv_mul_f32 v10, v10, v12\nv_mul_f32 v11, v11, v12")
    E("v_add_f32 v22, v10, v10\nv_add_f32 v23, v11, v11\nv_add_f32 v24, v10, v10\nv_add_f32 v25, v11, v11")
    cmul(E, 34, 20, 20, 26); cmul(E, 36, 34, 34, 26); cmul(E, 38, 36, 36, 26)
    put(rowof[0], 22, 1, 0, 30)
    for k in range(1, 9):
        cmul(E, 22, 22, 20, 26)
        if k < 8: cmul(E, 24, 24, 32, 28)
        put(rowof[k], 22, 1, 0, 30)
        if k < 8:
            b = 256 * k
            put(rowof[b], 24, 1, 0, 31)
            st, reg, cnt = (2, 34, 4) if k == 1 else (4, 36, 2) if k < 4 else (8, 38, 1)
            src = 24
            for i in range(1, cnt + 1):
                cmul(E, 40, src, reg, 28); src = 40
                put(rowof[b + st * i], 40, 1, 0, 31)
    E("L1_kj:")
    E("v_and_b32 v4, 31, v2\nv_mul_u32_u24 v5, 528, v4\nv_lshrrev_b32 v6, 5, v2\nv_lshl_add_u32 v5, v6, 4, v5")
    E(f"s_waitcnt vmcnt(0) lgkmcnt(0)\ns_barrier\ns_cmp_lg_u32 {sw}, 0\ns_cbranch_scc1 L1_end")
    E.lg = []; E.lg_done = 0
    NB = 6
    def rd(s):
        b = 48 + (s % NB) * 8
        E.lds(f"ds_read_b128 {vr(b)}, v5 offset:{s*32}", s); E.lds(f"ds_read_b128 {vr(b+4)}, v5 offset:{YB+s*32}", s)
    for s in range(NB): rd(s)
    E(f"v_sub_u32 v6, 255, v4\nv_lshlrev_b32 v6, 4, v6\nv_and_b32 v7, 1, v2\nv_cmp_eq_u32 s[40:41], 1, v7")
    E(f"s_mul_i32 s36, s34, {KC_STRIDE}\ns_add_u32 s36, s36, {KC_OFF}\ns_add_u32 s37, s36, 4160")
    for s in range(16):
        b = 48 + (s % NB) * 8
        E.wait(lg=s)
        E(f"v_mfma_f32_32x32x16_bf16 v[16:31], {vr(b)}, {vr(b+4)}, {'0' if s == 0 else 'v[16:31]'}")
        if s + NB < 16: rd(s + NB)
    E("s_nop 7\ns_nop 3")
    A = 16
    R1 = [0, 0, 1, 2, 2, 2, 3, 4, 4]; R2 = [0, 0, 0, 1, 1, 1, 2, 2, 2]
    def slots(half):
        H = H0 if half == 0 else H1
        out = []
        for base in ([0, 1024, 1280, 1536] if half == 0 else [256, 512, 768, 1792]):
            v0 = H.index(base)
            if base == 0: m = [A + v0 + i for i in range(9)]
            elif base == 256: m = [A + v0 + i for i in R1]
            elif base < 1024: m = [A + v0 + i for i in R2]
            else: m = [A + v0] * 4 + ['T'] + [A + v0 + 1] * 4
            out.append((base, m, A + v0))
        return out
    for half in range(2):
        E("s_mov_b32 exec_lo, -1\ns_mov_b32 exec_hi, 0" if half == 0 else "s_mov_b32 exec_lo, 0\ns_mov_b32 exec_hi, -1")
        for sl, (base, m, g0) in enumerate(slots(half)):
            if 'T' in m:
                E(f"v_cndmask_b32 v15, v{g0}, v{g0+1}, s[40:41]")
                m = [15 if x == 'T' else x for x in m]
            for i in range(4):
                E(f"v_cvt_pk_bf16_f32 v{48+sl*8+i}, v{m[7-2*i]}, v{m[6-2*i]}")
                E(f"v_cvt_pk_bf16_f32 v{52+sl*8+i}, v{m[8-2*i]}, v{m[7-2*i]}")
            E(f"v_subrev_u32 v{8+sl}, {2*base}, v6")
    E("s_mov_b64 exec, -1")
    for sl in range(4):
        E(f"buffer_store_dwordx4 {vr(48+sl*8)}, v{8+sl}, {sWS}, s36 offen {SC}")
        E(f"buffer_store_dwordx4 {vr(52+sl*8)}, v{8+sl}, {sWS}, s37 offen {SC}")
    E("v_mov_b32 v81, 0\nv_mov_b32 v82, 0\nv_mov_b32 v83, 0\nv_cvt_pk_bf16_f32 v80, v16, v81\nv_cmp_eq_u32 vcc, 0, v2")
    E("v_and_b32 v7, 3, v2\nv_lshlrev_b32 v7, 4, v7\nv_cndmask_b32 v80, 0, v80, vcc\nv_add_u32 v12, 4096, v7\nv_add_u32 v13, 8256, v7")
    E("v_cmp_gt_u32 vcc, 4, v2\ns_nop 1\nv_cndmask_b32 v12, v12, v13, vcc\ns_mov_b64 exec, 0xff")
    E(f"buffer_store_dwordx4 v[80:83], v12, {sWS}, s36 offen {SC}")
    E("s_endpgm")

    E("L1_ln:")
    E(f"s_sub_u32 s34, s2, {NPK + NKG}")
    E(f"v_lshrrev_b32 v3, 5, v0\nv_and_b32 v4, 31, v2\ns_mul_i32 s35, s34, {8*1152}\nv_mul_u32_u24 v5, 1152, v3\nv_add_u32 v5, s35, v5")
    E("v_lshl_add_u32 v6, v4, 4, v5\nv_lshl_add_u32 v7, v4, 2, v5")
    E("s_waitcnt lgkmcnt(0)")
    E("global_load_dwordx4 v[8:11], v6, s[16:17]\nglobal_load_dwordx4 v[12:15], v6, s[16:17] offset:512\nglobal_load_dword v16, v7, s[16:17] offset:1024")
    E("s_mov_b32 s8, s6\ns_mov_b32 s9, s7")
    E(f"s_cmp_ge_u32 s34, 16\ns_cbranch_scc1 L1_nopf")
    E("s_getpc_b64 s[32:33]\nL1_pc2:\ns_add_u32 s32, s32, L2_codestart-L1_pc2\ns_addc_u32 s33, s33, 0")
    E("v_lshlrev_b32 v60, 7, v0\nv_min_u32 v61, L3_codeend-L2_codestart-4, v60\nglobal_load_dword v62, v61, s[32:33]")
    E("v_add_u32 v60, 32768, v60\nv_min_u32 v61, L3_codeend-L2_codestart-4, v60\nglobal_load_dword v63, v61, s[32:33]")
    E("L1_nopf:")
    RS = 2368
    E(f"v_mul_u32_u24 v5, {RS}, v3\nv_lshl_add_u32 v6, v4, 5, v5\nv_lshl_add_u32 v7, v4, 3, v5")
    E("s_waitcnt vmcnt(0)")
    X = 20
    for i in range(9): E(f"v_lshlrev_b32 v{X+2*i}, 16, v{8+i}\nv_and_b32 v{X+2*i+1}, 0xffff0000, v{8+i}")
    def red32(r, t):
        for sh in (8, 4, 2, 1): E(f"s_nop 1\nv_add_f32 v{r}, v{r}, v{r} row_ror:{sh}")
        E(f"v_mov_b32 v{t}, v{r}\ns_nop 1\nv_permlane16_swap_b32 v{r}, v{t}\nv_add_f32 v{r}, v{r}, v{t}")
    E(f"v_pk_add_f32 v[40:41], v[{X}:{X+1}], v[{X+2}:{X+3}]")
    for i in range(2, 9): E(f"v_pk_add_f32 v[40:41], v[40:41], v[{X+2*i}:{X+2*i+1}]")
    E("v_add_f32 v40, v40, v41")
    red32(40, 41)
    E("v_mul_f32 v40, 0x3ae38e39, v40")
    E("v_mov_b32 v44, 0\nv_mov_b32 v45, 0")
    for i in range(9):
        E(f"v_pk_add_f32 v[42:43], v[{X+2*i}:{X+2*i+1}], v[40:41] op_sel_hi:[1,0] neg_lo:[0,1] neg_hi:[0,1]")
        E(f"v_pk_fma_f32 v[44:45], v[42:43], v[42:43], v[44:45]")
    E("v_add_f32 v44, v44, v45")
    red32(44, 45)
    E("v_mul_f32 v44, 0x3ae38e39, v44\nv_cvt_pk_bf16_f32 v44, v44, v40\nv_and_b32 v40, 0xffff0000, v44\nv_lshlrev_b32 v44, 16, v44")
    E("v_add_f32 v44, 0x3727c5ac, v44\nv_cvt_pk_bf16_f32 v44, v44, v44\nv_lshlrev_b32 v44, 16, v44\nv_sqrt_f32 v44, v44\ns_nop 0")
    E("v_cvt_pk_bf16_f32 v44, v44, v44\nv_lshlrev_b32 v44, 16, v44\nv_rcp_f32 v44, v44\ns_nop 0")
    P = 64
    for i in range(9):
        E(f"v_pk_add_f32 v[42:43], v[{X+2*i}:{X+2*i+1}], v[40:41] op_sel_hi:[1,0] neg_lo:[0,1] neg_hi:[0,1]")
        E(f"v_cvt_pk_bf16_f32 v43, v42, v43\nv_lshlrev_b32 v42, 16, v43\nv_and_b32 v43, 0xffff0000, v43")
        E(f"v_pk_mul_f32 v[42:43], v[42:43], v[44:45] op_sel_hi:[1,0]")
        E(f"v_cvt_pk_bf16_f32 v{P+2*i}, v42, v{X+2*i}\nv_cvt_pk_bf16_f32 v{P+2*i+1}, v43, v{X+2*i+1}")
    E(f"ds_write_b128 v6, {vr(P)}\nds_write_b128 v6, {vr(P+4)} offset:16\nds_write_b128 v6, {vr(P+8)} offset:1024\nds_write_b128 v6, {vr(P+12)} offset:1040\nds_write_b64 v7, {vr(P+16,2)} offset:2048")
    E(f"v_bfe_u32 v3, v2, 2, 2\nv_mul_u32_u24 v3, {RS}, v3\nv_lshrrev_b32 v4, 4, v0\nv_lshl_add_u32 v3, v4, 5, v3\nv_and_b32 v4, 3, v2\nv_lshl_add_u32 v3, v4, 3, v3")
    E(f"v_lshlrev_b32 v4, 4, v0\ns_mul_i32 s36, s34, 18432\ns_add_u32 s36, s36, {US_OFF}")
    E("s_waitcnt lgkmcnt(0)\ns_barrier")
    E.lg = []; E.lg_done = 0
    for j in range(5):
        E.lds(f"ds_read_b64_tr_b16 {vr(8+4*j,2)}, v3 offset:{j*512}", j); E.lds(f"ds_read_b64_tr_b16 {vr(10+4*j,2)}, v3 offset:{j*512+4*RS}", j)
    for j in range(5):
        if j == 4: E(f"s_cmp_ge_u32 {sw}, 2\ns_cbranch_scc1 L1_end")
        E.wait(lg=j)
        E(f"buffer_store_dwordx4 {vr(8+4*j)}, v4, {sWS}, s36 offen {SC}")
        if j < 4: E("s_add_u32 s36, s36, 4096")
    E("L1_end:\ns_endpgm")
    w1, _ = frag_tables()
    E(".p2align 6\n.type T_w1,@object\nT_w1:")
    for ks in range(18):
        for hf in range(2):
            E(".long " + ", ".join(str(int(x) * 1024) for x in list(w1[ks, 9*hf:9*hf+9]) + [0] * 7))
    E(".size T_w1, .-T_w1")
    return E.text(), kd(name, 104, 80, 104)
```

```python
from layout import *
from emit import *
NCV, NP2, NAF = 144, 144, 72
K2_WGS = NCV + NP2 + NAF + 1
UB = 4096
KB = UB + 32768
TB = KB
K2_LDS = KB + 33 * 1024

def gen_k2(opt=None):
    opt = opt or {}
    O = lambda k, d: opt.get(k, d)
    SC = O("k2sc", "sc1"); HSC = O("hbsc", "")
    E = Em(); name = "conv_kernel"
    sWS = "s[8:11]"; sw = "s3"
    E(f".globl {name}\n.p2align 8\n.type {name},@function\n{name}:\nL2_codestart:")
    E(f"s_cmp_ge_u32 s2, {K2_WGS}\ns_cbranch_scc1 L2_end")
    E("s_load_dwordx2 s[6:7], s[0:1], 112\ns_load_dwordx2 s[4:5], s[0:1], 48\ns_load_dwordx4 s[16:19], s[0:1], 72")
    E(f"v_lshrrev_b32 v1, 6, v0\nv_and_b32 v2, 63, v0\ns_mov_b32 s10, 0x10000000\nv_readfirstlane_b32 {sw}, v1\ns_mov_b32 s11, 0x20000")
    E(f"s_cmp_ge_u32 s2, {NCV}\ns_cbranch_scc1 L2_other")
    E("s_lshr_b32 s20, s2, 4\ns_lshl_b32 s20, s20, 4\ns_and_b32 s21, s2, 7\ns_lshl_b32 s21, s21, 1\ns_add_u32 s20, s20, s21\ns_bfe_u32 s21, s2, 0x10003\ns_add_u32 s20, s20, s21")
    E("v_lshrrev_b32 v3, 3, v0\nv_mul_u32_u24 v3, 18432, v3\nv_lshrrev_b32 v4, 4, v0\nv_xor_b32 v4, v4, v0\nv_and_b32 v4, 7, v4\nv_lshl_add_u32 v3, v4, 4, v3")
    E(f"s_lshl_b32 s22, s20, 7\ns_add_u32 s22, s22, {US_OFF}")
    E(f"s_mul_i32 s23, s20, {4*KC_STRIDE}\ns_add_u32 s23, s23, {KC_OFF}\nv_lshlrev_b32 v4, 4, v0\ns_lshl_b32 s24, {sw}, 10")
    E(f"s_lshl_b32 s25, s20, 2\ns_add_u32 s25, s25, {sw}\ns_lshl_b32 s25, s25, 1\nv_mov_b32 v5, s25")
    E("s_waitcnt lgkmcnt(0)\ns_mov_b32 s8, s6\ns_mov_b32 s9, s7")
    for j in range(8):
        E(f"s_add_u32 m0, s24, {UB + j*4096}\ns_nop 0\nbuffer_load_dwordx4 v3, {sWS}, s22 offen lds\ns_add_u32 s22, s22, {32*18432}")
        E(f"s_add_u32 m0, s24, {KB + j*4096}\ns_nop 0\nbuffer_load_dwordx4 v4, {sWS}, s23 offen lds\ns_add_u32 s23, s23, 4096")
    E(f"s_cmp_lg_u32 {sw}, 0\ns_cbranch_scc1 L2_nok9\ns_mov_b32 m0, {KB + 32768}\ns_nop 0\nbuffer_load_dwordx4 v4, {sWS}, s23 offen lds\nL2_nok9:")
    E("global_load_ushort v6, v5, s[4:5]")
    E("v_mov_b32 v8, 0\nv_mov_b32 v9, 0\nv_mov_b32 v10, 0\nv_mov_b32 v11, 0\nds_write_b128 v4, v[8:11]")
    E("v_and_b32 v12, 15, v2\nv_lshrrev_b32 v13, 4, v2")
    E(f"v_lshlrev_b32 v14, 3, v13\nv_sub_u32 v14, v14, v12\nv_add_u32 v14, 2031, v14\nv_and_b32 v15, 1, v14\nv_mul_u32_u24 v15, {4160//2+1}, v15\nv_add_u32 v14, v14, v15\nv_lshlrev_b32 v14, 1, v14")
    E(f"s_mul_i32 s26, {sw}, {KC_STRIDE}\ns_add_u32 s26, s26, {KB}\nv_add_u32 v14, s26, v14")
    AB = 16
    for q in range(8): E(f"v_subrev_u32 v{AB+q}, {512*q + 448}, v14")
    BB = 24
    E(f"v_lshl_add_u32 v15, v12, 1, v13\ns_lshl_b32 s27, {sw}, 1")
    for rho in range(8):
        E(f"v_add_u32 v7, {30 - 4*rho}, v15\nv_bfe_u32 v5, v7, 1, 3\nv_xor_b32 v5, s27, v5\nv_lshlrev_b32 v5, 4, v5\nv_lshl_add_u32 v{BB+rho}, v7, 7, v5")
    E(f"v_lshrrev_b32 v7, 1, v13\nv_lshl_add_u32 v7, v12, 1, v7\nv_and_b32 v5, 7, v12\nv_xor_b32 v5, s27, v5\nv_lshlrev_b32 v5, 4, v5\nv_lshl_add_u32 v32, v7, 7, v5")
    E(f"v_and_b32 v5, 1, v13\nv_lshl_add_u32 v32, v5, 3, v32\nv_xor_b32 v33, 16, v32")
    ACC = 36; FR = [68, 132]; INI = 196
    E("s_waitcnt vmcnt(0) lgkmcnt(0)\ns_barrier")
    def loadA(rho, q):
        b = FR[rho & 1] + q * 4; o = 16 * (7 - rho)
        E.lds(f"ds_read2_b32 {vr(b,2)}, v{AB+q} offset0:{o} offset1:{o+1}", ("A", rho, q))
        E.lds(f"ds_read2_b32 {vr(b+2,2)}, v{AB+q} offset0:{o+2} offset1:{o+3}", ("A", rho, q))
    def loadB(rho, dl):
        b = FR[rho & 1] + 32 + dl * 4
        E.lds(f"ds_read_b128 {vr(b)}, v{BB+rho} offset:{dl*4096}", ("B", rho, dl))
    def loads(rho):
        L = []
        for i in range(8):
            L.append(lambda i=i: loadA(rho, i)); L.append(lambda i=i: loadB(rho, i))
        return L
    order = sorted([(q, dl) for q in range(8) for dl in range(8) if q + dl <= 7], key=lambda x: (max(x), x[0] + x[1]))
    for f in loads(0): f()
    ini = []
    for tau in range(8):
        ini.append(lambda tau=tau: E.lds(f"ds_read_b64 {vr(INI+tau*4,2)}, v32 offset:{UB + tau*4096}", ("I", tau)))
        ini.append(lambda tau=tau: E.lds(f"ds_read_b64 {vr(INI+tau*4+2,2)}, v33 offset:{UB + tau*4096}", ("I", tau)))
    E("v_lshlrev_b32 v6, 16, v6")
    RES = 228
    val = []
    for tau in range(8):
        r = INI + tau * 4
        val.append(("w", tau))
        val += [f"v_lshlrev_b32 v8, 16, v{r}", f"v_and_b32 v9, 0xffff0000, v{r}", f"v_lshlrev_b32 v10, 16, v{r+1}", f"v_and_b32 v11, 0xffff0000, v{r+1}",
                f"v_lshlrev_b32 v{r}, 16, v{r+2}", f"v_and_b32 v{r+1}, 0xffff0000, v{r+2}", f"v_lshlrev_b32 v{r+2}, 16, v{r+3}", f"v_and_b32 v{r+3}, 0xffff0000, v{r+3}",
                f"v_fmac_f32 v{r}, v8, v6", f"v_fmac_f32 v{r+1}, v9, v6", f"v_fmac_f32 v{r+2}, v10, v6", f"v_fmac_f32 v{r+3}, v11, v6"]
    seen = set()
    for rho in range(8):
        nxt = loads(rho + 1) if rho < 7 else []
        if rho == 1: nxt = nxt + ini
        ordr = order if rho < 7 else sorted(order, key=lambda x: (x[0] + x[1], x[0]))
        for i, (q, dl) in enumerate(ordr):
            tau = q + dl
            E.wait(lg=[("A", rho, q), ("B", rho, dl)])
            a = FR[rho & 1] + q * 4; b = FR[rho & 1] + 32 + dl * 4; c = ACC + tau * 4
            E(f"v_mfma_f32_16x16x32_bf16 {vr(c)}, {vr(a)}, {vr(b)}, {vr(c) if tau in seen else '0'}")
            seen.add(tau)
            if nxt: nxt.pop(0)()
            elif rho >= 2:
                for _ in range(2):
                    if val:
                        x = val.pop(0)
                        if isinstance(x, tuple): E.wait(lg=("I", x[1])); x = val.pop(0)
                        E(x)
        assert not nxt
    assert not val
    E(f"s_mul_i32 s26, {sw}, 8384\ns_add_u32 s26, s26, {TB}\nv_lshlrev_b32 v7, 5, v12\nv_lshl_add_u32 v7, v13, 3, v7\nv_add_u32 v7, s26, v7")
    E(f"v_bfe_u32 v3, v2, 2, 2\nv_mul_u32_u24 v3, 8384, v3\nv_lshrrev_b32 v5, 4, v0\nv_lshl_add_u32 v3, v5, 5, v3\nv_and_b32 v5, 3, v2\nv_lshl_add_u32 v3, v5, 3, v3\nv_add_u32 v3, {TB}, v3")
    E(f"s_lshr_b32 s28, s20, 1\ns_lshl_b32 s28, s28, 15\ns_and_b32 s29, s20, 1\ns_lshl_b32 s29, s29, 3\ns_add_u32 s28, s28, s29")
    if HB_OFF: E(f"s_add_u32 s28, s28, {HB_OFF}")
    for tau in range(8):
        c = ACC + tau * 4; r = INI + tau * 4
        E(f"v_pk_add_f32 {vr(c,2)}, {vr(c,2)}, {vr(r,2)}\nv_pk_add_f32 {vr(c+2,2)}, {vr(c+2,2)}, {vr(r+2,2)}")
        E(f"v_cvt_pk_bf16_f32 v{c}, v{c}, v{c+1}\nv_cvt_pk_bf16_f32 v{c+1}, v{c+2}, v{c+3}\nds_write_b64 v7, {vr(c,2)} offset:{tau*512}")
    E("s_waitcnt lgkmcnt(0)\ns_barrier")
    E.lg = []; E.lg_done = 0
    for j in range(8): E.lds(f"ds_read_b64_tr_b16 {vr(68+2*j,2)}, v3 offset:{j*512}", j)
    for j in range(8):
        E.wait(lg=j)
        E(f"buffer_store_dwordx2 {vr(68+2*j,2)}, v4, {sWS}, s28 offen {HSC}")
        if j < 7: E("s_add_u32 s28, s28, 4096")
    E("s_endpgm")

    E("L2_other:")
    E("s_getpc_b64 s[32:33]\nL2_pc:\ns_add_u32 s32, s32, T_w2-L2_pc\ns_addc_u32 s33, s33, 0")
    E(f"s_cmp_ge_u32 s2, {NCV + NP2}\ns_cbranch_scc1 L2_aff")
    E(f"s_sub_u32 s20, s2, {NCV}")
    E("s_mul_i32 s21, s20, 7282\ns_lshr_b32 s21, s21, 16\ns_mul_i32 s22, s21, 9\ns_sub_u32 s22, s20, s22")
    E(f"s_lshr_b32 s23, s21, 2\ns_sub_u32 s24, s21, {sw}\ns_and_b32 s24, s24, 3")
    E("s_mul_i32 s25, s24, 9\ns_add_u32 s25, s25, s22\ns_lshl_b32 s25, s25, 6")
    E(f"s_mul_i32 s26, s20, 36864\nv_lshlrev_b32 v4, 4, v0\ns_lshl_b32 s27, {sw}, 10\ns_mov_b32 s14, {576*4608*2}\ns_mov_b32 s15, 0x20000")
    E("s_waitcnt lgkmcnt(0)\ns_mov_b32 s12, s18\ns_mov_b32 s13, s19\ns_mov_b32 s8, s6\ns_mov_b32 s9, s7")
    for j in range(9):
        E(f"s_add_u32 m0, s27, {j*4096}\ns_nop 0\nbuffer_load_dwordx4 v4, s[12:15], s26 offen lds\ns_add_u32 s26, s26, 4096")
    E("s_load_dwordx16 s[48:63], s[32:33], s25")
    E(f"v_lshrrev_b32 v3, 2, v2\nv_mul_u32_u24 v3, 1152, v3\ns_mul_i32 s28, {sw}, 288\nv_add_u32 v3, s28, v3\nv_and_b32 v5, 3, v2")
    E("v_lshl_add_u32 v12, v5, 3, v3\nv_lshl_add_u32 v3, v5, 4, v3")
    for r in range(4): E(f"s_add_u32 s29, s23, {r+1}\ns_and_b32 s29, s29, 3\ns_lshl_b32 s29, s29, 6\nv_add_u32 v{8+r}, s29, v3")
    E(f"s_lshl_b32 s30, s23, 2\ns_add_u32 s30, s30, {sw}\ns_mul_i32 s30, s30, {WP_STRIDE}\ns_add_u32 s30, s30, {WP_OFF}\nv_lshlrev_b32 v4, 4, v2")
    E("s_waitcnt vmcnt(0) lgkmcnt(0)\ns_barrier")
    E.lg = []; E.lg_done = 0
    for t in range(9):
        a, o = (8 + t // 2, 8 * (t & 1)) if t < 8 else (12, 256)
        E.lds(f"ds_read_b64_tr_b16 {vr(20+4*t,2)}, v{a} offset:{o}", t)
        E.lds(f"ds_read_b64_tr_b16 {vr(22+4*t,2)}, v{a} offset:{o+16*1152}", t)
    for t in range(9):
        E.wait(lg=t)
        E(f"s_add_u32 s31, s30, s{48+t}\nbuffer_store_dwordx4 {vr(20+4*t)}, v4, {sWS}, s31 offen {SC}")
    E("s_endpgm")

    E("L2_aff:")
    E(f"s_cmp_ge_u32 s2, {NCV + NP2 + NAF}\ns_cbranch_scc1 L2_flags")
    E(f"s_sub_u32 s20, s2, {NCV + NP2}\ns_lshl_b32 s20, s20, 2\ns_add_u32 s20, s20, {sw}")
    E("s_mul_i32 s21, s20, 3641\ns_lshr_b32 s21, s21, 16\ns_mul_i32 s22, s21, 18\ns_sub_u32 s22, s20, s22")
    E(f"s_lshl_b32 s22, s22, 2\ns_add_u32 s22, s22, {36*64}")
    E(f"v_and_b32 v3, 15, v2\nv_lshrrev_b32 v4, 4, v2\nv_mul_u32_u24 v5, {4608*4}, v4\nv_lshl_add_u32 v5, v3, 2, v5")
    E(f"s_lshl_b32 s23, s20, 6\ns_add_u32 s23, s23, {CS_OFF}\ns_lshl_b32 s24, s20, 5\nv_lshl_add_u32 v6, v3, 1, s24")
    E("v_cmp_gt_u32 vcc, 2, v4\nv_mov_b32 v7, 0x40000000")
    E("s_waitcnt lgkmcnt(0)\ns_mov_b32 s8, s6\ns_mov_b32 s9, s7\nv_cndmask_b32 v7, v7, v5, vcc")
    for i in range(5):
        E(f"buffer_load_dword v{8+i}, v{5 if i < 4 else 7}, {sWS}, s23 offen")
        if i < 4: E(f"s_add_u32 s23, s23, {4*4608*4}")
    E("global_load_ushort v13, v6, s[16:17]\ns_load_dword s25, s[32:33], s22")
    E(f"s_mul_i32 s26, s21, {WP_STRIDE}\ns_add_u32 s26, s26, {WP_OFF}\nv_lshlrev_b32 v4, 4, v2\nv_mov_b32 v18, 0\nv_mov_b32 v19, 0")
    E("s_waitcnt vmcnt(0) lgkmcnt(0)\ns_add_u32 s26, s26, s25")
    E("v_add_f32 v8, v8, v9\nv_add_f32 v10, v10, v11\nv_add_f32 v8, v8, v12\nv_add_f32 v8, v8, v10")
    E("v_mov_b32 v9, v8\ns_nop 1\nv_permlane16_swap_b32 v8, v9\nv_add_f32 v8, v8, v9\nv_mov_b32 v9, v8\ns_nop 1\nv_permlane32_swap_b32 v8, v9\nv_add_f32 v8, v8, v9")
    E("v_cvt_pk_bf16_f32 v9, v8, v8\nv_and_b32 v9, 0xffff0000, v9\nv_or_b32 v16, v13, v9\nv_sub_f32 v8, v8, v9")
    E("v_cvt_pk_bf16_f32 v9, v8, v8\nv_and_b32 v9, 0xffff0000, v9\nv_sub_f32 v10, v8, v9\nv_cvt_pk_bf16_f32 v17, v8, v10")
    E(f"buffer_store_dwordx4 v[16:19], v4, {sWS}, s26 offen {SC}")
    E("s_endpgm")
    E("L2_flags:")
    E(f"v_lshlrev_b32 v3, 7, v0\nv_mov_b32 v4, 0\ns_mov_b32 s20, {FL_OFF}\ns_waitcnt lgkmcnt(0)\ns_mov_b32 s8, s6\ns_mov_b32 s9, s7")
    for i in range(4):
        E(f"buffer_store_dword v4, v3, {sWS}, s20 offen sc1\ns_add_u32 s20, s20, 32768")
    E("L2_end:\ns_endpgm")
    w1, w2 = frag_tables()
    E(".p2align 6\n.type T_w2,@object\nT_w2:")
    for j in range(4):
        for p in range(9):
            E(".long " + ", ".join(str(int(x) * 1024) for x in list(w2[j, p]) + [0] * 7))
    E(".long " + ", ".join(str(int(x) * 1024) for x in w1[18]))
    E(".size T_w2, .-T_w2")
    return E.text(), kd(name, 232, 80, 232)
```

```python
from layout import *
from emit import *

NSLOT = 9
K3_STAT = NSLOT * SF * 1024
K3_LDS = K3_STAT + 1024

def gen_k3(stamps=False, LA=5, NRING=8, opt=None):
    opt = opt or {}
    O = lambda k, d: opt.get(k, d)
    E = Em()
    _vm = E.vmem
    def vmem_dbg(txt, tag=None):
        k = tag[0] if isinstance(tag, tuple) else tag
        if k in O("drop", []) and not (k == "dma" and tag[1] < 2):
            E.vm_drop = getattr(E, "vm_drop", set()); E.vm_drop.add(tag); return
        if k in O("plain", []): txt = txt.replace(" sc1", "")
        _vm(txt, tag)
    E.vmem = vmem_dbg
    _wait = E.wait
    def wait_dbg(vm=None, lg=None):
        if vm in getattr(E, "vm_drop", set()): vm = None
        _wait(vm=vm, lg=lg)
    E.wait = wait_dbg
    name = "mlp_kernel"
    sWS, sOUT, sB2 = "s[8:11]", "s[12:15]", "s[16:19]"
    sw, sMt, sFq, sg, sFt = "s20", "s21", "s22", "s23", "s24"
    sW, sLds, sX, sHX = "s25", "s26", "s27", ["s28", "s29", "s30", "s31"]
    sFlOwn, sFlH, sFlP, sRow = "s32", "s33", "s34", "s35"
    sDiag, sM = "s[40:41]", [None, "s[42:43]", "s[44:45]", "s[46:47]"]
    sT, sT2, sSpin, sA = "s50", "s51", "s52", "s36"
    sPo = ["s53", "s54", "s55"]; sPi, sP8o, sP8b, sLo, sHi, sOo = "s56", "s57", "s58", "s48", "s49", "s59"
    vL16, vDMA, vX, vFst, vFH, vStat, vFlag, vT0, vT1, vT2 = [f"v{i}" for i in range(1, 11)]
    vD = ["v11", "v12", "v13"]
    vFval, vFP = "v14", "v15"
    AFF = 16
    ACC1 = 24
    ACC2 = ACC1 + 144
    HBv = ACC2 + 72
    ST = ACC2
    ONES = ACC2 + 16
    def acc1(t, mt): return ACC1 + (t * 2 + mt) * 4
    def acc2(t, mt): return ACC2 + (t * 2 + mt) * 4
    FREEQ = [acc1(2 * p + 1, mt) for p in range(9) for mt in range(2)]
    XA, WR, PE = 0, 144, 176
    def xreg(ks, mt): return XA + (ks * 2 + mt) * 4
    nstamp = [0]
    TM = "s_memrealtime" if O("stamps", 1) == 2 else "s_memtime"
    def stamp():
        if stamps:
            i = nstamp[0]; nstamp[0] += 1
            E(f"{TM} s[{62+2*i}:{63+2*i}]"); E.wait_all(vm=False)

    E(f".globl {name}\n.p2align 8\n.type {name},@function\n{name}:")
    if stamps: E(f"{TM} s[60:61]")
    E("s_cmp_ge_u32 s2, 256\ns_cbranch_scc1 L3_end")
    E("s_load_dwordx8 s[36:43], s[0:1], 88")
    E(f"v_lshrrev_b32 {vT0}, 6, v0\nv_and_b32 v0, 63, v0")
    E(f"v_readfirstlane_b32 {sw}, {vT0}")
    E(f"s_and_b32 {sT}, s2, 7\ns_lshr_b32 {sT2}, s2, 3")
    E(f"s_lshr_b32 {sFq}, {sT}, 1\ns_and_b32 {sT}, {sT}, 1\ns_lshl_b32 {sT}, {sT}, 3")
    E(f"s_and_b32 {sg}, {sT2}, 3\ns_lshr_b32 {sT2}, {sT2}, 2\ns_add_u32 {sMt}, {sT}, {sT2}")
    E(f"s_lshl_b32 {sFt}, {sFq}, 2\ns_add_u32 {sFt}, {sFt}, {sg}")
    E(f"s_mul_i32 {sW}, {sFt}, {WP_STRIDE}\ns_add_u32 {sW}, {sW}, {WP_OFF}")
    E(f"s_lshl_b32 {sLds}, {sw}, 12")
    E(f"v_lshlrev_b32 {vL16}, 4, v0\nv_add_u32 {vDMA}, {sLds}, {vL16}")
    E(f"v_and_b32 {vT0}, 15, v0\nv_lshrrev_b32 {vT1}, 4, v0")
    E(f"v_lshlrev_b32 {vX}, 15, {vT1}\nv_lshl_add_u32 {vX}, {vT0}, 4, {vX}")
    E(f"s_lshl_b32 {sRow}, {sMt}, 2\ns_add_u32 {sRow}, {sRow}, {sw}\ns_lshl_b32 {sRow}, {sRow}, 5")
    E(f"s_lshl_b32 {sX}, {sRow}, 4")
    if HB_OFF: E(f"s_add_u32 {sX}, {sX}, {HB_OFF}")
    E(f"s_mov_b32 s10, 0x10000000\ns_mov_b32 s11, 0x20000")
    E("s_waitcnt lgkmcnt(0)")
    E(f"s_mov_b32 s8, s42\ns_mov_b32 s9, s43")

    steps = steps_list(); pairs = pairs_of(); npass = len(PASSES)
    M = []
    fi = 0
    seen1 = set(); seen2 = set()
    pos = {}; endpos = {}
    peer_reg = {}
    for s in steps:
        if s[0] == 'g2' and s[1] > 0 and (s[1], s[2]) not in peer_reg:
            pk = len(peer_reg)
            peer_reg[(s[1], s[2])] = (PE + pk * 8) if pk < 10 else (XA + (pk - 10) * 8)
    last2 = {}
    for s in steps:
        pos.setdefault(s[:3], len(M))
        if s[0] == 'g1':
            _, q, ks, tiles = s
            for t in tiles:
                for mt in range(2):
                    c = acc1(t, mt)
                    B = ar(xreg(ks, mt)) if ks < 18 else vr(AFF + mt * 4)
                    C = vr(c) if (t, mt) in seen1 else "0"
                    seen1.add((t, mt))
                    M.append(dict(txt=f"v_mfma_f32_16x16x32_bf16 {vr(c)}, %A, {B}, {C}", frag=fi,
                                  vm=("x", ks) if ks < 18 else None, valu=("aff", mt) if ks == 18 else None))
                fi += 1
                if q == 0 and ks < 18 and t in (1, 3):
                    mt = t // 2
                    X = ar(xreg(ks, mt))
                    for j, A in enumerate([X, vr(ONES)]):
                        c = ST + (mt * 2 + j) * 4
                        M.append(dict(txt=f"v_mfma_f32_16x16x32_bf16 {vr(c)}, {A}, {X}, {vr(c) if ks else '0'}", frag=None, vm=("x", ks), valu=None))
        else:
            _, j, p, tiles = s
            for t in tiles:
                for mt in range(2):
                    c = acc2(t, mt)
                    B = vr(acc1(2 * p, mt)) if j == 0 else ar(peer_reg[(j, p)] + mt * 4)
                    C = vr(c) if (t, mt) in seen2 else "0"
                    seen2.add((t, mt))
                    M.append(dict(txt=f"v_mfma_f32_16x16x32_bf16 {vr(c)}, %A, {B}, {C}", frag=fi,
                                  vm=("peer", j, p) if j else None, valu=("h", p, mt) if j == 0 else None))
                    last2[t] = len(M)
                fi += 1
        endpos[s[:3]] = len(M)
    assert fi == NFRAG
    N = len(M)
    first_use = {}
    for n, m in enumerate(M):
        if m["frag"] is not None: first_use.setdefault(m["frag"], n)
    g2 = pos[('g2', 0, 0)]

    LQ = []
    for k in range(NSTAGE):
        dl = first_use[k * SF] - 2 * LA
        slot = k % NSLOT
        for i in range(SF // 4):
            def f(i=i, k=k):
                E.vmem(f"buffer_load_dwordx4 {vDMA}, {sWS}, {sW} offen offset:{i*1024} lds", ("dma", k))
            LQ.append([dl - O('dmalead', 40), i, f, k, 0,
                       f"s_add_u32 m0, {sLds}, {slot * SF * 1024}" if i == 0 else None,
                       f"s_add_u32 {sW}, {sW}, {SF * 1024}" if i == SF // 4 - 1 else None])
    for ks in range(18):
        for mt in range(2):
            def f(ks=ks, mt=mt):
                E.vmem(f"buffer_load_dwordx4 {ar(xreg(ks, mt))}, {vX}, {sWS}, {sX} offen offset:{mt*256}", ("x", ks))
            LQ.append([pos[('g1', 0, ks)] - O('dmalead', 40), 10 + mt, f, None, 0, None, f"s_add_u32 {sX}, {sX}, {4 * 32768}" if mt else None])
    LQ.sort(key=lambda x: (x[0], x[1]))
    def run_now(x):
        if x[5]: E(x[5] + "\ns_nop 0")
        x[2]()
        if x[6]: E(x[6])
    for _ in range(O("ninit", 18)): run_now(LQ.pop(0))

    E(f"s_mov_b32 s12, s38\ns_mov_b32 s13, s39\ns_mov_b32 s14, {2048*576*2}\ns_mov_b32 s15, 0x20000")
    E(f"s_mov_b32 s16, s36\ns_mov_b32 s17, s37\ns_mov_b32 s18, {576*2}\ns_mov_b32 s19, 0x20000")
    for i in range(3): E(f"v_add_u32 {vD[i]}, {i * 65536}, {vL16}")
    E(f"s_lshl_b32 {sT}, {sMt}, 4\ns_lshl_b32 {sT2}, {sFq}, 2\ns_add_u32 {sT}, {sT}, {sT2}")
    for j in range(4):
        E(f"s_add_u32 {sT2}, {sg}, {j}\ns_and_b32 {sT2}, {sT2}, 3\ns_add_u32 {sT2}, {sT2}, {sT}\ns_lshl_b32 {sT2}, {sT2}, 2\ns_add_u32 {sT2}, {sT2}, {sw}")
        if j == 0: E(f"s_lshl_b32 {sFlOwn}, {sT2}, 7\ns_add_u32 {sFlOwn}, {sFlOwn}, {FL_OFF}")
        E(f"s_mul_i32 {sHX[j]}, {sT2}, 18432\ns_add_u32 {sHX[j]}, {sHX[j]}, {HX_OFF}")
    E(f"s_lshl_b32 {sFlH}, {sT}, 2\ns_add_u32 {sFlH}, {sFlH}, {sw}\ns_lshl_b32 {sFlH}, {sFlH}, 7\ns_add_u32 {sFlH}, {sFlH}, {FL_OFF}")
    E(f"s_lshl_b32 {sT}, {sMt}, 4\ns_add_u32 {sT}, {sT}, {sg}\ns_lshl_b32 {sT}, {sT}, 2\ns_add_u32 {sT}, {sT}, {sw}\ns_lshl_b32 {sFlP}, {sT}, 7\ns_add_u32 {sFlP}, {sFlP}, {FL_OFF}")
    E(f"s_lshl_b32 {sT}, {sMt}, 2\ns_add_u32 {sT}, {sT}, {sg}\ns_lshl_b32 {sT}, {sT}, 2")
    E(f"s_lshl_b32 {sLo}, {sw}, 11\ns_add_u32 {sLo}, {sLo}, {PP_OFF}")
    for r in range(3):
        E(f"s_add_u32 {sT2}, {sFq}, {r+1}\ns_and_b32 {sT2}, {sT2}, 3\ns_add_u32 {sT2}, {sT2}, {sT}\ns_mul_i32 {sT2}, {sT2}, {3*8192}\ns_add_u32 {sT2}, {sT2}, {r*8192}\ns_add_u32 {sPo[r]}, {sT2}, {sLo}")
    E(f"s_add_u32 {sT2}, {sFq}, {sT}\ns_mul_i32 {sT2}, {sT2}, {3*8192}\ns_add_u32 {sPi}, {sT2}, {sLo}")
    E(f"s_add_u32 {sT2}, {sT}, {sw}\ns_lshl_b32 {sP8b}, {sT2}, 12\ns_add_u32 {sP8b}, {sP8b}, {P8_OFF}\ns_lshl_b32 {sT2}, {sFq}, 10\ns_add_u32 {sP8o}, {sP8b}, {sT2}")
    E(f"s_mov_b32 {sLo}, 0x3f80\ns_mov_b32 {sHi}, 0x3f800000")
    E(f"v_lshrrev_b32 {vT2}, 2, {vT0}\nv_cmp_eq_u32 {sDiag}, {vT2}, {vT1}")
    E(f"v_and_b32 {vT2}, 3, v0")
    for i in range(1, 4): E(f"v_cmp_eq_u32 {sM[i]}, {i}, {vT2}")
    E(f"v_lshlrev_b32 {vFH}, 9, {vT2}\nv_lshlrev_b32 {vFP}, 11, {vT2}")
    E(f"v_cmp_eq_u32 vcc, 0, v0\nv_mov_b32 {vFst}, 0x40000000\ns_nop 1\nv_cndmask_b32 {vFst}, {vFst}, 0, vcc")
    E(f"s_lshl_b32 {sT}, {sw}, 7\ns_add_u32 {sT}, {sT}, {K3_STAT}\nv_lshl_add_u32 {vT0}, {vT0}, 2, {sT}")
    E(f"v_lshlrev_b32 {vT2}, 2, v0\nv_add_u32 {vT2}, {K3_STAT + 512}, {vT2}\nv_cndmask_b32 {vStat}, {vT2}, {vT0}, {sDiag}")
    E(f"v_lshlrev_b32 {vT1}, 4, {vT1}")
    for i in range(4): E(f"v_mov_b32 v{ONES+i}, 0x3f803f80")
    for mt in range(2): E(f"v_mov_b32 v{AFF+mt*4+2}, 0\nv_mov_b32 v{AFF+mt*4+3}, 0")

    Q = []
    def task(earliest, fn, tag=None): Q.append([earliest, fn, tag])
    def vtask(earliest, txt, tag=None): task(earliest, lambda: E(txt), tag)
    done_at = {}
    EV = {}
    def at(n, fn): EV.setdefault(n, []).append(fn)
    e0 = endpos[('g1', 0, 17)] + 4
    inv = "0x3ae38e39"
    for mt in range(2):
        G, S = ST + mt * 8, ST + mt * 8 + 4
        a, b = f"v{G}", f"v{S}"
        r0, r1 = f"v{AFF+mt*4}", f"v{AFF+mt*4+1}"
        seq = [f"v_cndmask_b32 {a}, {a}, v{G+i}, {sM[i]}" for i in range(1, 4)]
        seq += [f"v_mul_f32 {b}, {inv}, {b}", f"v_mul_f32 {a}, {inv}, {a}", f"v_fma_f32 {a}, -{b}, {b}, {a}",
                f"v_max_f32 {a}, 0, {a}",
                f"v_cvt_pk_bf16_f32 {a}, {a}, {a}", f"v_lshlrev_b32 {a}, 16, {a}",
                f"v_add_f32 {a}, 0x3727c5ac, {a}",
                f"v_cvt_pk_bf16_f32 {a}, {a}, {a}", f"v_lshlrev_b32 {a}, 16, {a}",
                f"v_sqrt_f32 {a}, {a}\ns_nop 0",
                f"v_cvt_pk_bf16_f32 {r0}, {a}, -{b}", f"v_cvt_pk_bf16_f32 {r1}, -{b}, -{b}",
                f"v_lshlrev_b32 {a}, 16, {r0}", f"v_mul_f32 {a}, {a}, {a}", f"v_rcp_f32 {a}, {a}",
                f"v_cndmask_b32 {r0}, 0, {r0}, {sDiag}"]
        for x in seq: vtask(e0, x)
        vtask(e0, f"v_cndmask_b32 {r1}, 0, {r1}, {sDiag}", ("aff", mt))
        task(e0, lambda a=a, mt=mt: E.lds(f"ds_write_b32 {vStat}, {a} offset:{mt*64}", "statw"))
    def flag_store(val):
        if O("drain", 0): E.wait_all(lg=False)
        E(f"v_mov_b32 {vFval}, {val}")
        E.vmem(f"buffer_store_dword {vFval}, {vFst}, {sWS}, {sFlOwn} offen sc1", ("flag", val))
    slow = []
    def poll_check(tag, need, soff, voff):
        lab = f"L3_poll{len(slow)}"
        if O("nopoll", 0): return
        E.wait(vm=tag)
        E(f"v_cmp_gt_u32 vcc, {need}, {vFlag}\ns_cbranch_vccnz {lab}\n{lab}_ret:")
        slow.append((lab, need, soff, voff))
    SGAP, SLAT, VIS, LLAT = O("sgap", 20), O("slat", 90), O("vis", 80), O("llat", 80)
    flagpos = []
    tst = 0
    for q in range(npass):
        e = endpos[('g1', q, 18)] + 4
        u = 0
        for p in pairs[q]:
            for mt in range(2):
                T0, T1 = acc1(2 * p, mt), acc1(2 * p + 1, mt)
                for r in list(range(T0, T0 + 4)) + list(range(T1, T1 + 4)):
                    vtask(e, f"v_mul_f32 v{r}, v{r}, |v{r}|")
                src = [(T0, T0 + 1), (T0 + 2, T0 + 3), (T1, T1 + 1), (T1 + 2, T1 + 3)]
                for i, (x, y) in enumerate(src): vtask(e, f"v_cvt_pk_bf16_f32 v{T0+i}, v{x}, v{y}")
                for i in range(4): vtask(e, f"v_pk_max_i16 v{T0+i}, v{T0+i}, 0", ("h", p, mt) if i == 3 else None)
                def st(p=p, mt=mt, T0=T0, q=q):
                    assert ("h", p, mt) in done_at, (p, mt)
                    E.vmem(f"buffer_store_dwordx4 {vr(T0)}, {vL16}, {sWS}, {sA} offen sc1", ("hst", q))
                u += 1
                tst = max(tst + SGAP, e + 16 * u + 4)
                LQ.append([-10000 + tst, 0, st, None, tst, f"s_add_u32 {sA}, {sHX[0]}, {(p*2+mt)*1024}", None])
        fp = tst + SLAT
        flagpos.append(fp)
        at(fp, lambda q=q: (E.wait(vm=("hst", q)), flag_store(q + 1)))
    xfree = endpos[('g1', npass - 1, 17)]
    info = []; cur = [0]
    for q in range(npass):
        fl = flagpos[q] + VIS
        chk = fl + LLAT
        at(fl, lambda q=q: E.vmem(f"buffer_load_dword {vFlag}, {vFH}, {sWS}, {sFlH} offen sc1", ("fl", q)))
        at(chk, lambda q=q: poll_check(("fl", q), q + 1, sFlH, vFH))
        for j in range(1, 4):
            for p in pairs[q]:
                for mt in range(2):
                    def ld(j=j, p=p, mt=mt):
                        E.vmem(f"buffer_load_dwordx4 {ar(peer_reg[(j,p)] + mt*4)}, {vL16}, {sWS}, {sA} offen sc1", ("peer", j, p))
                        info.append((j, p, cur[0] - g2, pos[('g2', j, p)] - g2))
                    ea = chk + 1
                    if peer_reg[(j, p)] < PE: ea = max(ea, xfree + 2)
                    assert ea < pos[('g2', j, p)]
                    LQ.append([pos[('g2', j, p)] - O('peerlead', 90), 20 + mt, ld, None, ea, f"s_add_u32 {sA}, {sHX[j]}, {(p*2+mt)*1024}", None])
    LQ.sort(key=lambda x: (x[0], x[1]))
    if O("verbose", 0):
        print("N", N, "g2", g2, "flagpos", [f - g2 for f in flagpos])
    tp = 0
    for r in range(3):
        e = last2[2 * r + 1] + 6
        for mt in range(2):
            T0, T1 = acc2(2 * r, mt), acc2(2 * r + 1, mt)
            for i, (x, y) in enumerate([(T0, T0 + 1), (T0 + 2, T0 + 3), (T1, T1 + 1), (T1 + 2, T1 + 3)]):
                vtask(e, f"v_cvt_pk_bf16_f32 v{T0+i}, v{x}, v{y}")
            task(e + mt * O("pgap", 14), lambda r=r, mt=mt, T0=T0: E.vmem(f"buffer_store_dwordx4 {vr(T0)}, {vL16}, {sWS}, {sPo[r]} offen offset:{mt*1024} sc1", "pst"))
    e = last2[8] + 6
    P8 = FREEQ[0]
    for mt in range(2):
        T = acc2(8, mt)
        vtask(e, f"v_cvt_pk_bf16_f32 v{P8+mt*2}, v{T}, v{T+1}"); vtask(e, f"v_cvt_pk_bf16_f32 v{P8+mt*2+1}, v{T+2}, v{T+3}")
    task(e, lambda: E.vmem(f"buffer_store_dwordx4 {vr(P8)}, {vL16}, {sWS}, {sP8o} offen sc1", "pst"), "pst_done")
    f4 = min(e + 8 + O("slat4", 70), N - 1)
    at(f4, lambda: (E.wait(vm="pst"), flag_store(4)))
    TH = [FREEQ[1], FREEQ[2]]; TB = FREEQ[3]; T8 = FREEQ[4]; T8b = FREEQ[5]; RS = FREEQ[6]
    def tailpf():
        E(f"s_mul_i32 {sT2}, {sg}, 18\ns_lshl_b32 {sT}, {sFq}, 2\ns_add_u32 {sT2}, {sT2}, {sT}")
        E(f"s_lshl_b32 {sOo}, {sT2}, 4")
        E(f"s_lshl_b32 {sT2}, {sT2}, 15\ns_lshl_b32 {sT}, {sRow}, 4\ns_add_u32 {sT}, {sT}, {sT2}")
        if HB_OFF: E(f"s_add_u32 {sT}, {sT}, {HB_OFF}")
        for mt in range(2): E.vmem(f"buffer_load_dwordx4 {vr(TH[mt])}, {vX}, {sWS}, {sT} offen offset:{mt*256}", "tpf")
        E.vmem(f"buffer_load_dwordx4 {vr(TB)}, {vT1}, {sB2}, {sOo} offen", "tpf")
        E(f"s_mul_i32 {sT}, {sRow}, 1152\ns_add_u32 {sOo}, {sOo}, {sT}")
        for mt in range(2): E.lds(f"ds_read_b32 v{RS+mt}, {vT0} offset:{mt*64}", "rs")
    def tailpf8():
        a = f"v{RS+2}"; b = f"v{RS+3}"
        E(f"v_lshrrev_b32 {a}, 5, v0\nv_lshlrev_b32 {a}, 15, {a}\nv_and_b32 {b}, 15, v0\nv_lshl_add_u32 {a}, {b}, 4, {a}")
        E(f"v_and_b32 {b}, 16, v0\nv_lshrrev_b32 {b}, 1, {b}\nv_add_u32 {a}, {a}, {b}")
        E(f"s_mul_i32 {sT2}, {sg}, {18*32768}\ns_lshl_b32 {sT}, {sRow}, 4\ns_add_u32 {sT}, {sT}, {sT2}\ns_add_u32 {sT}, {sT}, {HB_OFF + 16*32768}")
        for mt in range(2): E.vmem(f"buffer_load_dwordx2 {vr(T8+mt*2,2)}, {a}, {sWS}, {sT} offen offset:{mt*256}", "tpf")
        E(f"v_lshrrev_b32 {b}, 1, {vT1}\ns_mul_i32 {sT}, {sg}, 288")
        E.vmem(f"buffer_load_dwordx2 {vr(T8b,2)}, {b}, {sB2}, {sT} offen offset:256", "tpf")
    tpf = g2 + 200
    at(tpf, tailpf); at(tpf + 7, tailpf8)
    Q2 = []
    e = tpf + 120
    first = True
    for mt in range(2):
        for i in range(4):
            h, b = TH[mt] + i, TB + i
            lo, hi = HBv + mt * 8 + i * 2, HBv + mt * 8 + i * 2 + 1
            for x in [f"v_lshlrev_b32 v{lo}, 16, v{h}", f"v_and_b32 v{hi}, 0xffff0000, v{h}", f"v_lshlrev_b32 {vT2}, 16, v{b}", f"v_add_f32 v{lo}, v{lo}, {vT2}",
                      f"v_and_b32 {vT2}, 0xffff0000, v{b}", f"v_add_f32 v{hi}, v{hi}, {vT2}"]:
                if first: Q2.append([e, lambda x=x: (E.wait(vm="tpf"), E(x)), None]); first = False
                else: Q2.append([e, lambda x=x: E(x), None])
    Q2.append([e, lambda: E(f"v_and_b32 {vT2}, 15, v0"), None])
    Q2.append([e, lambda: E(f"v_mul_u32_u24 {vT2}, 1152, {vT2}"), None])
    Q2.append([e, lambda: E(f"v_add_u32 {vStat}, {vT2}, {vT1}"), None])
    Q = sorted(Q + Q2, key=lambda x: x[0])
    flP = min(f4 + O("vis4", 60), N - 1)
    at(flP, lambda: E.vmem(f"buffer_load_dword {vFlag}, {vFP}, {sWS}, {sFlP} offen sc1", "flP"))

    rd_next = [0]; bar_done = [-1]; forced = []; lead = []
    def pick(n):
        for x in LQ:
            if x[4] <= n and (x[3] is None or x[3] - (NSLOT - 2) <= bar_done[0]): return x
        return None
    pend = [None]; post = []
    def flush_pend():
        while post: E(post.pop(0))
        if pend[0] is not None:
            x = pend[0]; pend[0] = None
            E("s_nop 0"); x[2]()
            if x[6]: E(x[6])
    def issue_read():
        f = rd_next[0]; rd_next[0] += 1
        k = f // SF
        if f % SF == 0:
            if any(x[3] == k for x in LQ) or (pend[0] is not None and pend[0][3] == k):
                flush_pend()
                for x in [x for x in LQ if x[3] == k]:
                    LQ.remove(x); run_now(x); forced.append(("dma", k))
            E.wait(vm=("dma", k))
            if not O("nobar", 0): E("s_barrier")
            bar_done[0] = k
        addr = (k % NSLOT) * SF * 1024 + (f % SF) * 1024
        E.lds(f"ds_read_b128 {ar(WR + (f % NRING) * 4)}, {vD[addr >> 16]} offset:{addr & 65535}", ("fr", f))
    def waits_for(m, n):
        if m["vm"] is not None:
            while E.vm.count(m["vm"]) < 2 and m["vm"] not in getattr(E, "vm_drop", set()):
                flush_pend()
                if E.vm.count(m["vm"]) >= 2: break
                x = pick(n); LQ.remove(x); run_now(x); forced.append(m["vm"])
        E.wait(vm=m["vm"], lg=("fr", m["frag"]) if m["frag"] is not None else None)
    stamp()
    for _ in range(LA): issue_read()
    last_vm = -100
    stamp_at = {pos[('g1', 0, 1)], pos[('g1', 1, 0)], pos[('g1', 2, 0)], g2, pos[('g2', 1, 0)], pos[('g2', 1, pairs[1][0])], last2[1], last2[8]}
    isread = lambda n: n < N and M[n]["frag"] is not None and first_use[M[n]["frag"]] == n and M[n]["frag"] + LA < NFRAG
    for n, m in enumerate(M):
        cur[0] = n
        if n in stamp_at: stamp()
        if m["valu"] is not None:
            while m["valu"] not in done_at:
                it = Q.pop(0); assert it[0] <= n, (it, n); it[1]()
                if it[2]: done_at[it[2]] = E.n
            if E.n - done_at[m["valu"]] < 2: E("s_nop 1")
        waits_for(m, n)
        A = ar(WR + (m["frag"] % NRING) * 4) if m["frag"] is not None else ""
        E(m["txt"].replace("%A", A))
        n0 = E.n
        if n + 1 < N: waits_for(M[n + 1], n)
        gapreq = O("lgap0", 4) if n < pos[('g1', 1, 0)] else O("lgap", 4)
        if E.n == n0 and post: E(post.pop(0))
        if pend[0] is None and not post and not isread(n + 1) and n + 1 - last_vm >= gapreq:
            x = pick(n + 1)
            if x is not None and (x[5] is None or E.n == n0):
                LQ.remove(x); pend[0] = x; pend_at = n + 1
                if x[5]: E(x[5])
        slots = 2 - max(0, E.n - n0 - 1)
        nv = len(E.vm)
        for fn in EV.pop(n, []):
            fn(); slots -= 2
        if len(E.vm) != nv: last_vm = n
        if isread(n):
            issue_read(); slots -= 1
        elif pend[0] is not None and pend_at <= n:
            x = pend[0]; pend[0] = None
            if x[3] is not None: lead.append(first_use[x[3] * SF] - n)
            x[2](); slots = 0; last_vm = n
            if x[6]: post.append(x[6])
        while slots > 0 and Q and Q[0][0] <= n:
            it = Q.pop(0); it[1](); slots -= 1
            if it[2]: done_at[it[2]] = E.n
    flush_pend()
    assert not Q and not EV and not LQ, (len(Q), EV.keys(), len(LQ))
    if O("verbose", 0): print(info); print("forced", forced); print("lead", lead)
    stamp()
    poll_check("flP", 4, sFlP, vFP)
    stamp()
    IN = FREEQ[7:13]; IN8 = FREEQ[13:16]
    for r in range(3):
        for mt in range(2):
            E.vmem(f"buffer_load_dwordx4 {vr(IN[r*2+mt])}, {vL16}, {sWS}, {sPi} offen offset:{mt*1024} sc1", ("in", r))
        if r < 2: E(f"s_add_u32 {sPi}, {sPi}, 8192")
    E(f"s_cmp_lg_u32 {sw}, {sFq}\ns_cbranch_scc1 L3_no8a")
    for i in range(3):
        E(f"s_add_u32 {sT}, {sFq}, {i+1}\ns_and_b32 {sT}, {sT}, 3\ns_lshl_b32 {sT}, {sT}, 10\ns_add_u32 {sT}, {sT}, {sP8b}")
        E(f"buffer_load_dwordx4 {vr(IN8[i])}, {vL16}, {sWS}, {sT} offen sc1")
    E("L3_no8a:")
    E.wait_all()
    for mt in range(2):
        T0, T1 = acc2(6, mt), acc2(7, mt)
        dst = [T0, T0 + 1, T0 + 2, T0 + 3, T1, T1 + 1, T1 + 2, T1 + 3]
        for r in range(3):
            for i in range(4):
                x = IN[r * 2 + mt] + i
                E(f"v_dot2_f32_bf16 v{dst[2*i]}, v{x}, {sLo}, v{dst[2*i]}\nv_dot2_f32_bf16 v{dst[2*i+1]}, v{x}, {sHi}, v{dst[2*i+1]}")
        E("s_nop 2")
        for i in range(8): E(f"v_fma_f32 v{dst[i]}, v{dst[i]}, v{RS+mt}, v{HBv+mt*8+i}")
        for i in range(4): E(f"v_cvt_pk_bf16_f32 v{T0+i}, v{dst[2*i]}, v{dst[2*i+1]}")
        if mt: E(f"s_add_u32 {sOo}, {sOo}, {16*1152}")
        E(f"buffer_store_dwordx4 {vr(T0)}, {vStat}, {sOUT}, {sOo} offen {O('outflav','')}")
    E(f"s_cmp_lg_u32 {sw}, {sFq}\ns_cbranch_scc1 L3_no8b")
    E(f"s_mul_i32 {sT}, {sRow}, 1152\ns_mul_i32 {sT2}, {sg}, 288\ns_add_u32 {sT}, {sT}, {sT2}")
    E(f"v_add_u32 {vT2}, {vT2}, v{RS+3}")
    for mt in range(2):
        T = acc2(8, mt)
        for r in range(3):
            for i in range(2):
                x = IN8[r] + mt * 2 + i
                E(f"v_dot2_f32_bf16 v{T+2*i}, v{x}, {sLo}, v{T+2*i}\nv_dot2_f32_bf16 v{T+2*i+1}, v{x}, {sHi}, v{T+2*i+1}")
        Z = HBv + mt * 4
        for i in range(2):
            h, b = T8 + mt * 2 + i, T8b + i
            E(f"v_lshlrev_b32 v{Z+2*i}, 16, v{h}\nv_and_b32 v{Z+2*i+1}, 0xffff0000, v{h}")
            E(f"v_dot2_f32_bf16 v{Z+2*i}, v{b}, {sLo}, v{Z+2*i}\nv_dot2_f32_bf16 v{Z+2*i+1}, v{b}, {sHi}, v{Z+2*i+1}")
        E("s_nop 2")
        for i in range(4): E(f"v_fma_f32 v{T+i}, v{T+i}, v{RS+mt}, v{Z+i}")
        E(f"v_cvt_pk_bf16_f32 v{T}, v{T}, v{T+1}\nv_cvt_pk_bf16_f32 v{T+1}, v{T+2}, v{T+3}")
        if mt: E(f"s_add_u32 {sT}, {sT}, {16*1152}")
        E(f"buffer_store_dwordx2 {vr(T,2)}, {vT2}, {sOUT}, {sT} offen offset:256 {O('outflav','')}")
    E("L3_no8b:")
    if stamps:
        stamp()
        E("s_waitcnt vmcnt(0)")
        stamp()
        E(f"s_lshl_b32 {sT}, s2, 2\ns_add_u32 {sT}, {sT}, {sw}\ns_lshl_b32 {sT}, {sT}, 6\ns_add_u32 {sT}, {sT}, {TS_OFF}")
        E(f"v_mov_b32 {vT0}, 0")
        for i in range(nstamp[0] + 1):
            E(f"v_mov_b32 {vT1}, s{60+2*i}\nbuffer_store_dword {vT1}, {vT0}, {sWS}, {sT} offen offset:{i*4}")
    E("L3_end:\ns_endpgm")
    for lab, need, soff, voff in slow:
        E(f"{lab}:\ns_mov_b32 {sSpin}, 0\n{lab}_l:")
        E(f"buffer_load_dword {vFlag}, {voff}, {sWS}, {soff} offen sc1\ns_waitcnt vmcnt(0)")
        E(f"v_cmp_gt_u32 vcc, {need}, {vFlag}\ns_cbranch_vccz {lab}_ret")
        E(f"s_add_u32 {sSpin}, {sSpin}, 1\ns_cmp_lt_u32 {sSpin}, 0x40000\ns_cbranch_scc1 {lab}_l\ns_branch {lab}_ret")
    E("L3_codeend:")
    ideal = [16 * (b - a) for a, b in zip([0] + sorted(stamp_at), sorted(stamp_at) + [N])]
    txt = E.text()
    if O("xsc", None): txt = txt.replace(" sc1", " " + O("xsc", None))
    return txt, kd(name, 512, 96, 256), nstamp[0] + 1, ideal

if __name__ == "__main__":
    body, k, ns, ideal = gen_k3(stamps=True, opt={"verbose": 1})
    hdr = f"; @launch kernel=mlp_kernel grid=(256,1,1) block=(256,1,1) lds={K3_LDS}\n.amdgcn_target \"amdgcn-amd-amdhsa--gfx950\"\n.text\n"
    open("k3.s", "w").write(hdr + body + '.section .rodata,"a"\n' + k)
    print("stamps", ns, "lines", len(body.split("\n")), ideal)
```

```python
import numpy as np, os
L, D, F = 2048, 576, 4608
PASSES = [int(x) for x in os.environ.get("PASSES", "8,6,4").split(",")]
AFF0_AFTER = 2
EARLY_B = int(os.environ.get("EARLY_B", "9"))
TM_STEPS = int(os.environ.get("TM_STEPS", "9"))
SF = 16
NFRAG = 666
NSTAGE = (NFRAG + SF - 1) // SF
WP_STRIDE = NSTAGE * SF * 1024
def al(x, a=4096): return (x + a - 1) // a * a
HB_OFF = 0
WP_OFF = al(HB_OFF + 72 * 2048 * 16)
HX_OFF = al(WP_OFF + 16 * WP_STRIDE)
PP_OFF = al(HX_OFF + 256 * 72 * 1024)
P8_OFF = al(PP_OFF + 256 * 24 * 1024)
FL_OFF = al(P8_OFF + 64 * 16 * 1024)
FL_BYTES = 256 * 4 * 128
US_OFF = al(FL_OFF + FL_BYTES)
KC_STRIDE = 8320
KC_OFF = al(US_OFF + 256 * 576 * 32)
CS_OFF = al(KC_OFF + 576 * KC_STRIDE)
TS_OFF = al(CS_OFF + 18 * 4608 * 4)
WS_USED = TS_OFF + (1 << 20)

def tile0(q): return sum(PASSES[:q])
def pairs_of():
    pairs = []; t = 0
    for q in range(len(PASSES)):
        pairs.append(list(range(t // 2, (t + PASSES[q]) // 2))); t += PASSES[q]
    return pairs

def steps_list():
    st = []
    np_ = len(PASSES)
    tl = lambda q: list(range(tile0(q), tile0(q) + PASSES[q]))
    for q in range(np_):
        for ks in range(18):
            st.append(('g1', q, ks, tl(q)))
            if q == 1 and ks == AFF0_AFTER:
                st.append(('g1', 0, 18, tl(0)))
        if q >= 1:
            st.append(('g1', q, 18, tl(q)))
    pairs = pairs_of()
    ks2 = [(0, p) for p in range(9)]
    for q in range(np_):
        for p in pairs[q]:
            for j in range(1, 4): ks2.append((j, p))
    NO = [0, 1, 2, 3, 4, 5, 8]
    for i, (j, p) in enumerate(ks2[:36 - TM_STEPS]):
        st.append(('g2', j, p, NO + ([6, 7] if i < EARLY_B else [])))
    for grp in [[0, 1], [2, 3], [4, 5], [8]]:
        for (j, p) in ks2[36 - TM_STEPS:]:
            st.append(('g2', j, p, grp))
    for (j, p) in ks2[EARLY_B:]:
        st.append(('g2', j, p, [6, 7]))
    return st

def bf2f(u): return (u.astype(np.uint32) << 16).view(np.float32)
def f2bf(x):
    x = np.ascontiguousarray(x, dtype=np.float32); u = x.view(np.uint32)
    return ((u + 0x7FFF + ((u >> 16) & 1)) >> 16).astype(np.uint16)

lane = np.arange(64); li = lane & 15; lq = lane >> 4; e8 = np.arange(8)
def dcol(t, i, Fq):
    if t == 8: return 128 + i
    pr = (Fq + 1 + t // 2) & 3
    return 32 * pr + 8 * (i >> 2) + 4 * (t & 1) + (i & 3)

def pack_wp(w1, b1, w2):
    cs = bf2f(w1).sum(0, dtype=np.float32)
    hi = f2bf(cs); r = cs - bf2f(hi); mid = f2bf(r); r2 = r - bf2f(mid); lo = f2bf(r2)
    out = np.zeros((16, WP_STRIDE // 2), np.uint16)
    st = steps_list()
    for Ft in range(16):
        Fq, g = Ft >> 2, Ft & 3
        fr = []
        for s in st:
            if s[0] == 'g1':
                _, q, ks, tiles = s
                for t in tiles:
                    f = 288 * Ft + 16 * t + li
                    if ks < 18:
                        d = 32 * ks + 8 * lq[:, None] + e8[None]
                        fr.append(w1[d, f[:, None]])
                    else:
                        a = np.zeros((64, 8), np.uint16)
                        a[:, 0] = b1[f]; a[:, 1] = hi[f]; a[:, 2] = mid[f]; a[:, 3] = lo[f]
                        fr.append(a)
            else:
                _, j, p, tiles = s
                mem = (g + j) & 3
                f = 288 * (4 * Fq + mem) + 32 * p + 16 * (e8[None] >> 2) + 4 * lq[:, None] + (e8[None] & 3)
                for t in tiles:
                    d = 144 * g + dcol(t, li, Fq)
                    fr.append(w2[f, d[:, None]])
        fr = np.stack(fr)
        assert fr.shape[0] == NFRAG
        out[Ft, :NFRAG * 512] = fr.reshape(-1)
    return out

def pack_hb(h):
    return np.ascontiguousarray(h.reshape(2048, 72, 8).transpose(1, 0, 2))

def frag_tables():
    w1 = np.zeros((19, 18), np.int64); w2 = np.zeros((4, 9, 9), np.int64)
    fi = 0
    for s in steps_list():
        for t in s[3]:
            if s[0] == 'g1': w1[s[2], t] = fi
            else: w2[s[1], s[2], t] = fi
            fi += 1
    return w1, w2

H0 = list(range(9)) + [1024, 1032, 1280, 1288, 1536, 1544]
H1 = [256, 258, 260, 262, 264, 512, 516, 520, 768, 772, 776, 1792, 1800]
def krow(half, v): return 8 * (v // 4) + 4 * half + (v % 4)

def model_us(x, u):
    a = np.stack([u, x], -1).reshape(256, 8, 576, 2).transpose(0, 2, 3, 1)
    return np.ascontiguousarray(a)
def model_kc(K):
    out = np.zeros((576, KC_STRIDE // 2), np.uint16)
    R = K[:, ::-1]
    out[:, :2048] = R
    out[:, 2080 + 1: 2080 + 2049] = R
    return out

UF_OFF = KC_OFF
EP_OFF = KC_OFF + 16384
```

```python
import sys, json
from layout import *
import gen_k1, gen_k2, gen_k3
HDR = open("sequential_preLN__ssm_conv_s4d__dense_activation_squared_relu__prompt.s.ref").read().split("; Override launch")[0] if len(sys.argv) > 1 and sys.argv[1] == "final" else ""
def gen_all(opt=None, stamps=False):
    opt = opt or {}
    b1, d1 = gen_k1.gen_k1(opt)
    b2, d2 = gen_k2.gen_k2(opt)
    b3, d3, ns, ideal = gen_k3.gen_k3(stamps=stamps, LA=opt.get("LA", 5), opt=opt)
    hdr = HDR
    hdr += f"; @launch kernel=prep_kernel grid=({gen_k1.K1_WGS},1,1) block=(256,1,1) lds={gen_k1.K1_LDS}\n"
    hdr += f"; @launch kernel=conv_kernel grid=({gen_k2.K2_WGS},1,1) block=(256,1,1) lds={gen_k2.K2_LDS}\n"
    hdr += f"; @launch kernel=mlp_kernel grid=(256,1,1) block=(256,1,1) lds={gen_k3.K3_LDS}\n"
    hdr += '.amdgcn_target "amdgcn-amd-amdhsa--gfx950"\n.text\n'
    return hdr + b1 + b2 + b3 + '.section .rodata,"a"\n' + d1 + d2 + d3, ns
if __name__ == "__main__":
    opt = json.loads(sys.argv[2]) if len(sys.argv) > 2 else {}
    out = sys.argv[3] if len(sys.argv) > 3 else "sequential_preLN__ssm_conv_s4d__dense_activation_squared_relu__prompt.s"
    txt, ns = gen_all(opt)
    open(out, "w").write(txt)
    print("written", out, len(txt))
```

```python
class Em:
    def __init__(self):
        self.L = []
        self.vm = []; self.vm_done = 0
        self.lg = []; self.lg_done = 0
        self.n = 0
    def __call__(self, s):
        for x in s.split("\n"):
            x = x.strip()
            if not x: continue
            self.L.append(x)
            if not x.endswith(":") and not x.startswith((";", ".")): self.n += 1
    def vmem(self, s, tag=None):
        if len(self.vm) - self.vm_done >= 60:
            self("s_waitcnt vmcnt(56)"); self.vm_done = len(self.vm) - 56
        self(s); self.vm.append(tag)
    def lds(self, s, tag=None):
        if len(self.lg) - self.lg_done >= 14:
            self("s_waitcnt lgkmcnt(12)"); self.lg_done = len(self.lg) - 12
        self(s); self.lg.append(tag)
    def wait(self, vm=None, lg=None):
        parts = []
        if vm is not None:
            tags = vm if isinstance(vm, (list, set)) else [vm]
            idx = max(len(self.vm) - 1 - self.vm[::-1].index(t) for t in tags)
            if idx + 1 > self.vm_done:
                n = len(self.vm) - 1 - idx; assert n < 62
                parts.append(f"vmcnt({n})"); self.vm_done = len(self.vm) - n
        if lg is not None:
            tags = lg if isinstance(lg, (list, set)) else [lg]
            idx = max(len(self.lg) - 1 - self.lg[::-1].index(t) for t in tags)
            if idx + 1 > self.lg_done:
                n = len(self.lg) - 1 - idx; assert n < 15
                parts.append(f"lgkmcnt({n})"); self.lg_done = len(self.lg) - n
        if parts: self("s_waitcnt " + " ".join(parts))
    def wait_all(self, vm=True, lg=True):
        p = []
        if vm: p.append("vmcnt(0)"); self.vm_done = len(self.vm)
        if lg: p.append("lgkmcnt(0)"); self.lg_done = len(self.lg)
        self("s_waitcnt " + " ".join(p))
    def text(self): return "\n".join(self.L) + "\n"

def kd(name, vgpr, sgpr, accum):
    return f""".p2align 6
.amdhsa_kernel {name}
  .amdhsa_next_free_vgpr {vgpr}
  .amdhsa_next_free_sgpr {sgpr}
  .amdhsa_accum_offset {accum}
  .amdhsa_group_segment_fixed_size 0
  .amdhsa_kernarg_size 120
  .amdhsa_user_sgpr_count 2
  .amdhsa_user_sgpr_kernarg_segment_ptr 1
  .amdhsa_system_sgpr_workgroup_id_x 1
.end_amdhsa_kernel
"""
def vr(b, n=4): return f"v[{b}:{b+n-1}]"
def ar(b, n=4): return f"a[{b}:{b+n-1}]"
```

```python
import sys, json
from layout import *
import gen_k1, gen_k2, gen_k3
HDR = open("sequential_preLN__ssm_conv_s4d__dense_activation_squared_relu__prompt.s.ref").read().split("; Override launch")[0] if len(sys.argv) > 1 and sys.argv[1] == "final" else ""
def gen_all(opt=None, stamps=False):
    opt = opt or {}
    b1, d1 = gen_k1.gen_k1(opt)
    b2, d2 = gen_k2.gen_k2(opt)
    b3, d3, ns, ideal = gen_k3.gen_k3(stamps=stamps, LA=opt.get("LA", 5), opt=opt)
    if opt.get("rt", 0):
        def instr(b, d, k, swreg, endlab):
            lines = b.split("\n")
            i = [n for n, l in enumerate(lines) if l.endswith("_kernel:")][0]
            lines.insert(i + 1, "s_memrealtime s[96:97]")
            first = True
            for n, l in enumerate(lines):
                if l.startswith("s_cbranch_scc1 " + endlab) and first:
                    lines[n] = f"s_cbranch_scc1 RT{k}_x"; first = False
                elif l == "s_endpgm": lines[n] = f"s_branch RT{k}"
            j = [n for n, l in enumerate(lines) if l.startswith(endlab + ":")][0] + 2
            epi = f"""RT{k}:
s_mov_b64 exec, -1
s_waitcnt vmcnt(0)
s_memrealtime s[98:99]
s_lshl_b32 s94, s2, 2
s_add_u32 s94, s94, {swreg}
s_lshl_b32 s94, s94, 3
s_add_u32 s94, s94, {TS_OFF + 0x40000 + k * 0x10000}
v_mov_b32 v0, 0
s_waitcnt lgkmcnt(0)
v_mov_b32 v2, s96
v_mov_b32 v3, s98
buffer_store_dwordx2 v[2:3], v0, s[8:11], s94 offen sc1
RT{k}_x:
s_endpgm""".split("\n")
            lines[j:j] = epi
            import re
            return "\n".join(lines), re.sub(r"next_free_sgpr \d+", "next_free_sgpr 100", d)
        b1, d1 = instr(b1, d1, 0, "s3", "L1_end"); b2, d2 = instr(b2, d2, 1, "s3", "L2_end"); b3, d3 = instr(b3, d3, 2, "s20", "L3_end")
    hdr = HDR
    hdr += f"; @launch kernel=prep_kernel grid=({gen_k1.K1_WGS},1,1) block=(256,1,1) lds={gen_k1.K1_LDS}\n"
    hdr += f"; @launch kernel=conv_kernel grid=({gen_k2.K2_WGS},1,1) block=(256,1,1) lds={gen_k2.K2_LDS}\n"
    hdr += f"; @launch kernel=mlp_kernel grid=(256,1,1) block=(256,1,1) lds={gen_k3.K3_LDS}\n"
    hdr += '.amdgcn_target "amdgcn-amd-amdhsa--gfx950"\n.text\n'
    return hdr + b1 + b2 + b3 + '.section .rodata,"a"\n' + d1 + d2 + d3, ns
if __name__ == "__main__":
    opt = json.loads(sys.argv[2]) if len(sys.argv) > 2 else {}
    out = sys.argv[3] if len(sys.argv) > 3 else "sequential_preLN__ssm_conv_s4d__dense_activation_squared_relu__prompt.s"
    txt, ns = gen_all(opt)
    open(out, "w").write(txt)
    print("written", out, len(txt))
```

```python
import struct
from layout import *
from emit import *
LOG2E, INV2PI = "0x3fb8aa3b", "0x3e22f983"
TROW = 528
YB = 29 * TROW
TSZ = 61 * TROW
UB = (4 * TSZ + 255) // 256 * 256
F_LDS = UB + 32768
W2L = 73728
def fhex(p): return hex(struct.unpack('<I', struct.pack('<f', float(p)))[0])

def gen_front(opt=None):
    opt = opt or {}
    O = lambda k, d: opt.get(k, d)
    SC = O("k2sc", "sc1"); HSC = O("hbsc", "")
    E = Em(); name = "front_kernel"
    sWS = "s[8:11]"; sw = "s3"; sTag = "s12"
    ns = [0]
    def stamp():
        if O("fst", 0):
            E(f"{'s_memtime' if O('fst', 0) == 2 else 's_memrealtime'} s[{68+2*ns[0]}:{69+2*ns[0]}]"); E.wait_all(vm=False); ns[0] += 1
    def stamp_out():
        if O("fst", 0):
            E("s_waitcnt vmcnt(0)"); stamp()
            E(f"s_lshl_b32 s4, s2, 2\ns_add_u32 s4, s4, {sw}\ns_lshl_b32 s4, s4, 6\ns_add_u32 s4, s4, {TS_OFF + 0x80000}\nv_mov_b32 v0, 0")
            for i in range(ns[0]): E(f"v_mov_b32 v1, s{68+2*i}\nbuffer_store_dword v1, v0, {sWS}, s4 offen offset:{i*4}")
    E(f".globl {name}\n.p2align 8\n.type {name},@function\n{name}:\nLF_codestart:")
    E(f"s_cmp_ge_u32 s2, 256\ns_cbranch_scc1 LF_end")
    E("s_load_dwordx16 s[16:31], s[0:1], 0\ns_load_dwordx8 s[36:43], s[0:1], 64\ns_load_dwordx4 s[44:47], s[0:1], 104")
    E("s_getpc_b64 s[32:33]\nLF_pc:")
    E("v_lshlrev_b32 v3, 7, v0\nv_min_u32 v3, LF_codeend-LF_pc-4, v3\nglobal_load_dword v255, v3, s[32:33]")
    E(f"v_lshrrev_b32 v1, 6, v0\nv_and_b32 v2, 63, v0\ns_mov_b32 s10, 0x10000000\nv_readfirstlane_b32 {sw}, v1\ns_mov_b32 s11, 0x20000")
    E("s_and_b32 s4, s2, 7\ns_lshr_b32 s5, s2, 3")
    E(f"v_lshrrev_b32 v3, 5, v0\nv_and_b32 v4, 31, v2\ns_mul_i32 s35, s2, {8*1152}\nv_mul_u32_u24 v5, 1152, v3\nv_add_u32 v5, s35, v5")
    E("v_lshl_add_u32 v6, v4, 4, v5\nv_lshl_add_u32 v7, v4, 2, v5")
    E(f"s_mul_i32 s6, s4, 18\ns_add_u32 s6, s6, s5\ns_lshl_b32 s7, s6, 2\ns_add_u32 s7, s7, {sw}")
    E("s_lshl_b32 s13, s7, 8\nv_lshl_add_u32 v200, v2, 2, s13\ns_lshl_b32 s13, s7, 1\nv_mov_b32 v201, s13")
    E(f"v_lshlrev_b32 v210, 4, v0\ns_lshl_b32 s34, {sw}, 10\ns_mov_b32 s62, {576*4608*2}\ns_mov_b32 s63, 0x20000\ns_mov_b32 s66, {576*4608*2}\ns_mov_b32 s67, 0x20000")
    E("s_waitcnt lgkmcnt(0)")
    stamp()
    E("global_load_dwordx4 v[8:11], v6, s[16:17]\nglobal_load_dwordx4 v[12:15], v6, s[16:17] offset:512\nglobal_load_dword v16, v7, s[16:17] offset:1024")
    E(f"s_add_u32 s14, s46, {EP_OFF}\ns_addc_u32 s15, s47, 0\ns_load_dword {sTag}, s[14:15], 0")
    E("s_mov_b32 s8, s46\ns_mov_b32 s9, s47\ns_mov_b32 s60, s36\ns_mov_b32 s61, s37\ns_mov_b32 s64, s40\ns_mov_b32 s65, s41")
    E("s_cmp_ge_u32 s5, 18\ns_cbranch_scc1 LF_hl")
    E("global_load_dword v202, v200, s[18:19]\nglobal_load_dword v203, v200, s[20:21]\nglobal_load_ushort v206, v201, s[26:27]")
    E("global_load_dword v204, v200, s[22:23]\nglobal_load_dword v205, v200, s[24:25]\nglobal_load_ushort v207, v201, s[28:29]")
    E("LF_hl:")
    E(f"s_add_u32 s32, s32, T_w-LF_pc\ns_addc_u32 s33, s33, 0")
    RS = 2368
    E(f"v_mul_u32_u24 v5, {RS}, v3\nv_add_u32 v5, {UB}, v5\nv_lshl_add_u32 v6, v4, 5, v5\nv_lshl_add_u32 v7, v4, 3, v5")
    E(f"v_bfe_u32 v3, v2, 2, 2\nv_mul_u32_u24 v3, {RS}, v3\nv_lshrrev_b32 v4, 4, v0\nv_lshl_add_u32 v3, v4, 5, v3\nv_and_b32 v4, 3, v2\nv_lshl_add_u32 v3, v4, 3, v3\nv_add_u32 v3, {UB}, v3")
    E(f"s_mul_i32 s13, s2, 18432\ns_add_u32 s13, s13, {US_OFF}")
    E("s_cmp_ge_u32 s5, 18\ns_cbranch_scc1 LF_w0\ns_waitcnt vmcnt(6)\ns_branch LF_w1\nLF_w0:\ns_waitcnt vmcnt(0)\nLF_w1:")
    stamp()
    X = 20
    for i in range(9): E(f"v_lshlrev_b32 v{X+2*i}, 16, v{8+i}\nv_and_b32 v{X+2*i+1}, 0xffff0000, v{8+i}")
    for i in range(9):
        x = f"v[{X+2*i}:{X+2*i+1}]"
        if i == 1: E(f"v_pk_add_f32 v[40:41], v[{X}:{X+1}], {x}")
        elif i > 1: E(f"v_pk_add_f32 v[40:41], v[40:41], {x}")
        E(f"v_pk_fma_f32 v[44:45], {x}, {x}, v[44:45]" if i else f"v_pk_mul_f32 v[44:45], {x}, {x}")
    E("v_add_f32 v40, v40, v41\nv_add_f32 v44, v44, v45")
    for sh in (8, 4, 2, 1): E(f"s_nop 0\nv_add_f32 v40, v40, v40 row_ror:{sh}\nv_add_f32 v44, v44, v44 row_ror:{sh}")
    E("v_mov_b32 v41, v40\nv_mov_b32 v45, v44\ns_nop 0\nv_permlane16_swap_b32 v40, v41\nv_permlane16_swap_b32 v44, v45\nv_add_f32 v40, v40, v41\nv_add_f32 v44, v44, v45")
    E("v_mul_f32 v40, 0x3ae38e39, v40\nv_mul_f32 v44, 0x3ae38e39, v44\nv_fma_f32 v44, -v40, v40, v44\nv_max_f32 v44, 0, v44")
    E("v_cvt_pk_bf16_f32 v44, v44, v40\nv_and_b32 v40, 0xffff0000, v44\nv_lshlrev_b32 v44, 16, v44")
    E("v_add_f32 v44, 0x3727c5ac, v44\nv_cvt_pk_bf16_f32 v44, v44, v44\nv_lshlrev_b32 v44, 16, v44\nv_sqrt_f32 v44, v44\ns_nop 0")
    E("v_cvt_pk_bf16_f32 v44, v44, v44\nv_lshlrev_b32 v44, 16, v44\nv_rcp_f32 v44, v44\ns_nop 0")
    P = 64
    if not O("uexact", 1): E("v_mul_f32 v45, v40, v44")
    for i in range(9):
        if O("uexact", 1):
            E(f"v_pk_add_f32 v[42:43], v[{X+2*i}:{X+2*i+1}], v[40:41] op_sel_hi:[1,0] neg_lo:[0,1] neg_hi:[0,1]")
            E(f"v_cvt_pk_bf16_f32 v43, v42, v43\nv_lshlrev_b32 v42, 16, v43\nv_and_b32 v43, 0xffff0000, v43")
            E(f"v_pk_mul_f32 v[42:43], v[42:43], v[44:45] op_sel_hi:[1,0]")
        else:
            E(f"v_pk_fma_f32 v[42:43], v[{X+2*i}:{X+2*i+1}], v[44:45], v[44:45] op_sel:[0,0,1] op_sel_hi:[1,0,1] neg_lo:[0,0,1] neg_hi:[0,0,1]")
        E(f"v_cvt_pk_bf16_f32 v{P+2*i}, v42, v{X+2*i}\nv_cvt_pk_bf16_f32 v{P+2*i+1}, v43, v{X+2*i+1}")
    E(f"ds_write_b128 v6, {vr(P)}\nds_write_b128 v6, {vr(P+4)} offset:16\nds_write_b128 v6, {vr(P+8)} offset:1024\nds_write_b128 v6, {vr(P+12)} offset:1040\nds_write_b64 v7, {vr(P+16,2)} offset:2048")
    E(f"v_cmp_gt_u32 vcc, 128, v0\nv_mov_b32 v211, 0x40000000")
    E("s_waitcnt lgkmcnt(0)\ns_barrier")
    for j in range(5):
        E.lds(f"ds_read_b64_tr_b16 {vr(176+4*j,2)}, v3 offset:{j*512}", j); E.lds(f"ds_read_b64_tr_b16 {vr(178+4*j,2)}, v3 offset:{j*512+4*RS}", j)
    E(f"v_cndmask_b32 v211, v211, v210, vcc\ns_mul_i32 {sTag}, {sTag}, 0x9e3779b1\ns_add_u32 {sTag}, {sTag}, 0x7f4a7c15")
    for j in range(5):
        E.wait(lg=j)
        E.vmem(f"buffer_store_dwordx4 {vr(176+4*j)}, v{210 if j < 4 else 211}, {sWS}, s13 offen sc1", "us")
        if j < 4: E("s_add_u32 s13, s13, 4096")
    E(f"v_mov_b32 v212, {sTag}\nv_mov_b32 v251, 0\ns_lshl_b32 s15, s2, 5\ns_add_u32 s15, s15, {UF_OFF}")
    def pubflag(lab):
        E(f"s_barrier\ns_cmp_lg_u32 {sw}, 0\ns_cbranch_scc1 {lab}\ns_mov_b64 exec, 1\nbuffer_store_dword v212, v251, {sWS}, s15 offen sc1\ns_mov_b64 exec, -1\n{lab}:")
    stamp()
    nsc = ns[0]
    vm_save = (list(E.vm), E.vm_done)
    E("s_cmp_ge_u32 s5, 18\ns_cbranch_scc1 LF_help")
    def w2_prep(sS, T, sFq, sDst):
        E(f"s_mul_i32 s21, {sS}, 7282\ns_lshr_b32 s21, s21, 16\ns_mul_i32 s22, s21, 9\ns_sub_u32 s22, {sS}, s22")
        E(f"s_lshr_b32 {sFq}, s21, 2\ns_sub_u32 s24, s21, {sw}\ns_and_b32 s24, s24, 3\ns_mul_i32 s25, s24, 9\ns_add_u32 s25, s25, s22\ns_lshl_b32 s25, s25, 6")
        E(f"s_lshl_b32 {sDst}, {sFq}, 2\ns_add_u32 {sDst}, {sDst}, {sw}\ns_mul_i32 {sDst}, {sDst}, {WP_STRIDE}\ns_add_u32 {sDst}, {sDst}, {WP_OFF}")
        E(f"s_load_dwordx8 s[{T}:{T+7}], s[32:33], s25\ns_add_u32 s25, s25, 32\ns_load_dword s{T+8}, s[32:33], s25")
    w2_prep("s6", 88, "s49", "s50")
    E(f"s_mul_i32 s14, {sw}, {TSZ}\nv_lshl_add_u32 v3, v2, 3, s14")
    E(f"s_mov_b32 s34, {LOG2E}\ns_mov_b32 s35, {INV2PI}\ns_waitcnt vmcnt(5)")
    E("v_lshlrev_b32 v14, 16, v202\nv_and_b32 v15, 0xffff0000, v202\nv_lshlrev_b32 v12, 16, v206\nv_lshlrev_b32 v16, 16, v203\nv_and_b32 v17, 0xffff0000, v203")
    E("v_mul_f32 v14, s34, v14\nv_mul_f32 v15, s34, v15\nv_mul_f32 v12, s34, v12\nv_exp_f32 v14, v14\nv_exp_f32 v15, v15\nv_exp_f32 v12, v12\ns_nop 0")
    E("v_cvt_pk_bf16_f32 v15, v14, v15\nv_cvt_pk_bf16_f32 v12, v12, v12\nv_lshlrev_b32 v14, 16, v15\nv_and_b32 v15, 0xffff0000, v15\nv_lshlrev_b32 v12, 16, v12")
    for r in (14, 15, 16, 17): E(f"v_mul_f32 v{r}, v{r}, v12")
    E("v_mul_f32 v14, s34, v14\nv_mul_f32 v15, s34, v15\nv_mul_f32 v16, s35, v16\nv_mul_f32 v17, s35, v17")
    def cexp2(dst, p, t):
        ph = fhex(p)
        return [f"v_mul_f32 v{t}, {ph}, v14", f"v_mul_f32 v{t+2}, {ph}, v15", f"v_mul_f32 v{t+1}, {ph}, v16", f"v_mul_f32 v{t+3}, {ph}, v17",
                f"v_exp_f32 v{t}, -v{t}", f"v_exp_f32 v{t+2}, -v{t+2}", f"v_fract_f32 v{t+1}, v{t+1}", f"v_fract_f32 v{t+3}, v{t+3}",
                f"v_cos_f32 v{dst}, v{t+1}", f"v_sin_f32 v{dst+1}, v{t+1}", f"v_cos_f32 v{dst+2}, v{t+3}", f"v_sin_f32 v{dst+3}, v{t+3}",
                f"v_pk_mul_f32 {vr(dst,2)}, {vr(dst,2)}, {vr(t,2)} op_sel_hi:[1,0]", f"v_pk_mul_f32 {vr(dst+2,2)}, {vr(dst+2,2)}, {vr(t+2,2)} op_sel_hi:[1,0]"]
    PK = O("kpk", 1)
    def cmul2(dst, a, w, t):
        if PK:
            return [f"v_pk_mul_f32 {vr(t,2)}, {vr(a,2)}, {vr(w,2)} op_sel:[0,0] op_sel_hi:[0,1]", f"v_pk_mul_f32 {vr(t+2,2)}, {vr(a+2,2)}, {vr(w+2,2)} op_sel:[0,0] op_sel_hi:[0,1]",
                    f"v_pk_fma_f32 {vr(dst,2)}, {vr(a,2)}, {vr(w,2)}, {vr(t,2)} op_sel:[1,1,0] op_sel_hi:[1,0,1] neg_lo:[1,0,0]",
                    f"v_pk_fma_f32 {vr(dst+2,2)}, {vr(a+2,2)}, {vr(w+2,2)}, {vr(t+2,2)} op_sel:[1,1,0] op_sel_hi:[1,0,1] neg_lo:[1,0,0]"]
    def put(off, r, neg, t):
        n = '-' if neg else ''
        return [f"v_cvt_pk_bf16_f32 v{t}, v{r}, {n}v{r+1}", f"v_cvt_pk_bf16_f32 v{t+1}, v{r+2}, {n}v{r+3}", f"ds_write_b64 v3, {vr(t,2)} offset:{off}"]
    def weave(streams):
        out = []
        streams = [list(x) for x in streams]
        while any(streams):
            for x in streams:
                if x: out.append(x.pop(0))
        return out
    E(f"v_lshrrev_b32 v4, 3, v2\nv_and_b32 v5, 7, v2\nv_lshl_add_u32 v4, v4, 5, v5\nv_lshlrev_b32 v214, 5, v4\ns_lshl_b32 s48, {sw}, 8\ns_add_u32 s48, s48, {UF_OFF}")
    E("v_lshrrev_b32 v215, 3, v0\nv_mul_u32_u24 v215, 18432, v215\nv_lshrrev_b32 v4, 4, v0\nv_xor_b32 v4, v4, v0\nv_and_b32 v4, 7, v4\nv_lshl_add_u32 v215, v4, 4, v215")
    E(f"s_lshl_b32 s22, s6, 7\ns_add_u32 s22, s22, {US_OFF}\ns_lshl_b32 s24, {sw}, 10\ns_mul_i32 s23, s6, 36864")
    W8, YA, YBr, E1, E256, E2, E4, XA_, XBc, XT = 32, 36, 40, 44, 48, 52, 56, 60, 64, 68
    TT = [72, 80, 88, 96]
    rowof = {}
    for v, h in enumerate(H0): rowof[h] = krow(0, v)
    for v, h in enumerate(H1): rowof[h] = krow(1, v)
    K = weave([cexp2(W8, 8, TT[0]), cexp2(YBr, 128, TT[1]), cexp2(E1, 1, TT[2]), cexp2(E256, 256, TT[3])])
    K += ["v_add_f32 v12, v12, v12", f"v_lshlrev_b32 v{XA_}, 16, v204", f"v_lshlrev_b32 v{XA_+1}, 16, v205", f"v_and_b32 v{XA_+2}, 0xffff0000, v204", f"v_and_b32 v{XA_+3}, 0xffff0000, v205"]
    K += [f"v_mul_f32 v{XA_+i}, v{XA_+i}, v12" for i in range(4)]
    S0 = [f"v_mov_b32 v{TT[0]+4}, 0x3f80", f"v_mov_b32 v{TT[0]+5}, 0x3f80", f"ds_write_b64 v3, {vr(TT[0]+4,2)} offset:{YB}"] + put(YB + TROW, W8, 0, TT[0] + 6)
    src = W8
    for k in range(2, 16):
        S0 += cmul2(YA, src, W8, TT[0]) + put(YB + k * TROW, YA, 0, TT[0] + 4 + 2 * (k & 1)); src = YA
    S1 = put(YB + 16 * TROW, YBr, 0, TT[1] + 4)
    for k in range(17, 32): S1 += cmul2(YBr, YBr, W8, TT[1]) + put(YB + k * TROW, YBr, 0, TT[1] + 4 + 2 * (k & 1))
    XB1, XU = 104, 108
    S2 = cmul2(XB1, XA_, E256, TT[2]) + put(rowof[256] * TROW, XB1, 1, TT[2] + 4)
    srcb = XB1; c = 0
    for k in range(2, 8):
        b = 256 * k
        S2 += cmul2(XBc, srcb, E256, TT[2]) + put(rowof[b] * TROW, XBc, 1, TT[2] + 6); srcb = XBc
        st, reg, cnt = (4, E4, 2) if k < 4 else (8, W8, 1)
        s_ = XBc
        for i in range(1, cnt + 1):
            S2 += cmul2(XT, s_, reg, TT[2]) + put(rowof[b + st * i] * TROW, XT, 1, TT[2] + 4); s_ = XT
    S3 = cmul2(E2, E1, E1, TT[3]) + cmul2(E4, E2, E2, TT[3]) + put(rowof[0] * TROW, XA_, 1, TT[3] + 4)
    s_ = XA_
    for k in range(1, 9):
        S3 += cmul2(XU, s_, E1, TT[3]) + put(rowof[k] * TROW, XU, 1, TT[3] + 4 + 2 * (k & 1)); s_ = XU
    s_ = XB1
    for i in range(1, 5):
        S3 += cmul2(XU, s_, E2, TT[3]) + put(rowof[256 + 2 * i] * TROW, XU, 1, TT[3] + 4 + 2 * (i & 1)); s_ = XU
    K += weave([S0, S1, S2, S3])
    FLAG_AT, POLL_AT, CHK_AT = O("flag_at", 200), O("poll_at", 330), O("chk_at", 440)
    def check_dma():
        stamp()
        E("s_mov_b32 s54, 0\nLF_poll:\ns_waitcnt vmcnt(0)")
        E(f"v_cmp_ne_u32 vcc, {sTag}, v213\ns_cbranch_vccz LF_pollok\ns_add_u32 s54, s54, 1\ns_cmp_ge_u32 s54, 0x40000\ns_cbranch_scc1 LF_pollok")
        E(f"buffer_load_dword v213, v214, {sWS}, s48 offen sc1\ns_branch LF_poll\nLF_pollok:")
        stamp()
        for j in range(8):
            E(f"s_add_u32 m0, s24, {UB + j*4096}\ns_nop 0\nbuffer_load_dwordx4 v215, {sWS}, s22 offen sc1 lds\ns_add_u32 s22, s22, {32*18432}")
    CHK_AT = min(CHK_AT, len(K) - 1)
    for i, x in enumerate(K):
        if x.startswith("ds_"): E.lds(x, "tw")
        else: E(x)
        if i == FLAG_AT: E("s_waitcnt vmcnt(0)"); pubflag("LF_pub1")
        if i == POLL_AT: E(f"buffer_load_dword v213, v214, {sWS}, s48 offen sc1")
        if i == CHK_AT: check_dma()
    if O("verbose", 0): print("K len", len(K))
    E(f"v_and_b32 v5, 31, v2\nv_mul_u32_u24 v6, {TROW}, v5\nv_lshrrev_b32 v7, 5, v2\nv_lshl_add_u32 v6, v7, 4, v6\nv_add_u32 v6, s14, v6")
    NB = 6
    def rd(s):
        b = 96 + (s % NB) * 8
        E.lds(f"ds_read_b128 {vr(b)}, v6 offset:{s*32}", ("t", s)); E.lds(f"ds_read_b128 {vr(b+4)}, v6 offset:{YB+s*32}", ("t", s))
    for s in range(NB): rd(s)
    stamp()
    E(f"v_sub_u32 v5, 255, v5\nv_lshl_add_u32 v5, v5, 4, s14\nv_and_b32 v7, 1, v2\nv_cmp_eq_u32 s[52:53], 1, v7")
    A = 72
    AB, BB = 144, 152
    adr = ["v_lshlrev_b32 v250, 16, v207", "v_and_b32 v12, 15, v2", "v_lshrrev_b32 v13, 4, v2",
           "v_lshlrev_b32 v14, 3, v13", "v_sub_u32 v14, v14, v12", "v_add_u32 v14, 2031, v14", "v_and_b32 v15, 1, v14", f"v_mul_u32_u24 v15, {4160//2+1}, v15", "v_add_u32 v14, v14, v15", "v_lshl_add_u32 v14, v14, 1, s14"]
    AB, BB = 232, 240
    adr += [f"v_subrev_u32 v{AB+q}, {512*q + 448}, v14" for q in range(8)]
    adr += [f"v_lshl_add_u32 v15, v12, 1, v13\ns_lshl_b32 s27, {sw}, 1"]
    for rho in range(8):
        adr += [f"v_add_u32 v7, {(UB - 4096) // 128 + 30 - 4*rho}, v15", "v_bfe_u32 v8, v7, 1, 3", "v_xor_b32 v8, s27, v8", "v_lshlrev_b32 v8, 4, v8", f"v_lshl_add_u32 v{BB+rho}, v7, 7, v8"]
    assert (UB // 128) % 16 == 0
    adr += ["v_lshrrev_b32 v7, 1, v13", "v_lshl_add_u32 v7, v12, 1, v7", "v_and_b32 v8, 7, v12", "v_xor_b32 v8, s27, v8", "v_lshlrev_b32 v8, 4, v8", "v_lshl_add_u32 v32, v7, 7, v8",
            "v_and_b32 v8, 1, v13", "v_lshl_add_u32 v32, v8, 3, v32", f"v_add_u32 v32, {UB}, v32", "v_xor_b32 v33, 16, v32"]
    for s in range(16):
        b = 96 + (s % NB) * 8
        E.wait(lg=("t", s))
        E(f"v_mfma_f32_32x32x16_bf16 {vr(A,16)}, {vr(b)}, {vr(b+4)}, {'0' if s == 0 else vr(A,16)}")
        if s + NB < 16: rd(s + NB)
        if s < 9: E(f"buffer_load_dwordx4 a[{4*s}:{4*s+3}], v210, s[64:67], s23 offen\ns_add_u32 s23, s23, 4096")
        for _ in range(2 if s + NB < 16 else 5):
            if adr: E(adr.pop(0))
    while adr: E(adr.pop(0))
    E(f"v_mov_b32 v8, 0\nv_mov_b32 v9, 0\nv_mov_b32 v10, 0\nv_mov_b32 v11, 0\ns_nop 3")
    E(f"s_cmp_lg_u32 {sw}, 3\ns_cbranch_scc1 LF_nozero\nv_lshlrev_b32 v7, 4, v2\nv_add_u32 v7, {UB - 4096}, v7")
    for i in range(4): E(f"ds_write_b128 v7, v[8:11] offset:{i*1024}")
    E("LF_nozero:")
    R1 = [0, 0, 1, 2, 2, 2, 3, 4, 4]; R2 = [0, 0, 0, 1, 1, 1, 2, 2, 2]
    def slots(half):
        H = H0 if half == 0 else H1
        out = []
        for base in ([0, 1024, 1280, 1536] if half == 0 else [256, 512, 768, 1792]):
            v0 = H.index(base)
            if base == 0: m = [A + v0 + i for i in range(9)]
            elif base == 256: m = [A + v0 + i for i in R1]
            elif base < 1024: m = [A + v0 + i for i in R2]
            else: m = [A + v0] * 4 + ['T'] + [A + v0 + 1] * 4
            out.append((base, m, A + v0))
        return out
    for half in range(2):
        E("s_mov_b32 exec_lo, -1\ns_mov_b32 exec_hi, 0" if half == 0 else "s_mov_b32 exec_lo, 0\ns_mov_b32 exec_hi, -1")
        for sl, (base, m, g0) in enumerate(slots(half)):
            if 'T' in m:
                E(f"v_cndmask_b32 v15, v{g0}, v{g0+1}, s[52:53]")
                m = [15 if x == 'T' else x for x in m]
            for i in range(4):
                for dst, x, y in ((96+sl*8+i, m[7-2*i], m[6-2*i]), (100+sl*8+i, m[8-2*i], m[7-2*i])):
                    E(f"v_cvt_pk_bf16_f32 v{dst}, v{x}, v{y}")
            E(f"v_subrev_u32 v{16+sl}, {2*base}, v5")
    E("s_mov_b64 exec, -1")
    for sl in range(4):
        E(f"ds_write_b128 v{16+sl}, {vr(96+sl*8)}\nds_write_b128 v{16+sl}, {vr(100+sl*8)} offset:4160")
    E(f"v_cvt_pk_bf16_f32 v8, v{A}, v9\nv_cmp_eq_u32 vcc, 0, v2\nv_and_b32 v6, 3, v2\nv_lshl_add_u32 v6, v6, 4, s14\nv_cndmask_b32 v8, 0, v8, vcc")
    E("v_add_u32 v20, 4096, v6\nv_add_u32 v21, 8256, v6\nv_cmp_gt_u32 vcc, 4, v2\ns_nop 1\nv_cndmask_b32 v20, v20, v21, vcc\ns_mov_b64 exec, 0xff")
    E("ds_write_b128 v20, v[8:11]\ns_mov_b64 exec, -1")
    stamp()
    ACC = 36; FR = [68, 132]; INI = 196
    E("v_mov_b32 v4, v210")
    E("s_waitcnt vmcnt(9)"); E.wait_all(vm=False); E("s_barrier")
    E(f"s_or_b32 s30, s2, {sw}\ns_cmp_lg_u32 s30, 0\ns_cbranch_scc1 LF_nobump\ns_mov_b32 s31, {EP_OFF}\ns_mov_b64 exec, 1\nbuffer_store_dword v212, v251, {sWS}, s31 offen sc1\ns_mov_b64 exec, -1\nLF_nobump:")
    stamp()
    W2A, W2B = 8448, TSZ + 8448
    w2d = []
    for j in range(9):
        a, o = ("v4", W2A + j * 4096) if j < 4 else ("v4", W2B - 18432 + j * 4096) if j > 4 else ("v23", W2A + 16384)
        w2d.append(f"ds_write_b128 {a}, a[{4*j}:{4*j+3}] offset:{o}")
    E(f"s_cmp_ge_u32 {sw}, 2\ns_cselect_b32 s29, {W2B - 18432 - W2A}, 0\nv_add_u32 v23, s29, v4")
    def loadA(rho, q, h):
        b = FR[rho & 1] + q * 4; o = 16 * (7 - rho)
        E.lds(f"ds_read2_b32 {vr(b+2*h,2)}, v{AB+q} offset0:{o+2*h} offset1:{o+2*h+1}", ("A", rho, q))
    def loadB(rho, dl):
        b = FR[rho & 1] + 32 + dl * 4
        E.lds(f"ds_read_b128 {vr(b)}, v{BB+rho} offset:{dl*4096}", ("B", rho, dl))
    def loads(rho):
        L = []
        for i in range(8):
            L += [lambda i=i: loadA(rho, i, 0), lambda i=i: loadA(rho, i, 1), lambda i=i: loadB(rho, i)]
        return L
    order = sorted([(q, dl) for q in range(8) for dl in range(8) if q + dl <= 7], key=lambda x: (max(x), x[0] + x[1]))
    seq = []
    for rho in range(8):
        for (q, dl) in (order if rho < 7 else sorted(order, key=lambda x: (x[0] + x[1], x[0]))): seq.append((rho, q, dl))
    pre = loads(0)
    for _ in range(12): pre.pop(0)()
    ini = []
    for tau in range(8):
        ini.append(lambda tau=tau: E.lds(f"ds_read_b64 {vr(INI+tau*4,2)}, v32 offset:{tau*4096}", ("I", tau)))
        ini.append(lambda tau=tau: E.lds(f"ds_read_b64 {vr(INI+tau*4+2,2)}, v33 offset:{tau*4096}", ("I", tau)))
    val = []
    for tau in range(8):
        r = INI + tau * 4
        val += [f"v_lshlrev_b32 v8, 16, v{r}", f"v_and_b32 v9, 0xffff0000, v{r}", f"v_lshlrev_b32 v10, 16, v{r+1}", f"v_and_b32 v11, 0xffff0000, v{r+1}",
                f"v_lshlrev_b32 v{r}, 16, v{r+2}", f"v_and_b32 v{r+1}, 0xffff0000, v{r+2}", f"v_lshlrev_b32 v{r+2}, 16, v{r+3}", f"v_and_b32 v{r+3}, 0xffff0000, v{r+3}",
                f"v_fmac_f32 v{r}, v8, v250", f"v_fmac_f32 v{r+1}, v9, v250", f"v_fmac_f32 v{r+2}, v10, v250", f"v_fmac_f32 v{r+3}, v11, v250"]
    val += ["v_lshlrev_b32 v7, 5, v12", "v_lshl_add_u32 v7, v13, 3, v7", "v_add_u32 v7, s14, v7",
            "v_bfe_u32 v3, v2, 2, 2", f"v_mul_u32_u24 v3, {TSZ}, v3", "v_lshrrev_b32 v5, 4, v0", "v_lshl_add_u32 v3, v5, 5, v3", "v_and_b32 v5, 3, v2", "v_lshl_add_u32 v3, v5, 3, v3"]
    val += ["v_lshrrev_b32 v16, 2, v2", "v_mul_u32_u24 v16, 1152, v16", f"s_mul_i32 s29, {sw}, 288\ns_add_u32 s29, s29, {W2A}\nv_add_u32 v16, s29, v16",
            "v_lshl_add_u32 v21, v5, 3, v16", "v_lshl_add_u32 v16, v5, 4, v16", "v_lshlrev_b32 v22, 4, v2"]
    for r in range(4): val.append(f"s_add_u32 s29, s49, {r+1}\ns_and_b32 s29, s29, 3\ns_lshl_b32 s29, s29, 6\nv_add_u32 v{17+r}, s29, v16")
    w2q = []
    for t in range(9):
        a, o = (17 + t // 2, 8 * (t & 1)) if t < 8 else (21, 256)
        V = f"a[{4*t}:{4*t+1}]", f"a[{4*t+2}:{4*t+3}]"
        w2q.append(lambda a=a, o=o, V=V, t=t: E.lds(f"ds_read_b64_tr_b16 {V[0]}, v{a} offset:{o}", ("w2", t)))
        w2q.append(lambda a=a, o=o, V=V, t=t: E.lds(f"ds_read_b64_tr_b16 {V[1]}, v{a} offset:{o + TSZ}", ("w2", t)))
    w2s = [lambda t=t: (E.wait(lg=("w2", t)), E(f"s_add_u32 s29, s50, s{88+t}\nbuffer_store_dwordx4 a[{4*t}:{4*t+3}], v22, {sWS}, s29 offen {SC}")) for t in range(9)]
    W2AT = O("w2at", 6)
    E(f"s_lshr_b32 s28, s6, 1\ns_lshl_b32 s28, s28, 15\ns_and_b32 s29, s6, 1\ns_lshl_b32 s29, s29, 3\ns_add_u32 s28, s28, s29\ns_add_u32 s28, s28, {HB_OFF}")
    seen = set(); nxt = pre
    fin = []; lastn = {}
    for n, (rho, q, dl) in enumerate(seq): lastn[q + dl] = n
    def fin_tau(tau):
        c = ACC + tau * 4; r = INI + tau * 4
        return [f"v_add_f32 v{c+i}, v{c+i}, v{r+i}" for i in range(4)] + [f"v_cvt_pk_bf16_f32 v{c}, v{c}, v{c+1}", f"v_cvt_pk_bf16_f32 v{c+1}, v{c+2}, v{c+3}", ("T", tau)]
    def emit_fin(x):
        if isinstance(x, tuple): E.lds(f"ds_write_b64 v7, {vr(ACC + x[1]*4,2)} offset:{x[1]*512}", "T")
        else: E(x)
    E.wait(lg=[("A", 0, 0), ("B", 0, 0)])
    nfin = 0
    for n, (rho, q, dl) in enumerate(seq):
        if n % 36 == 0:
            assert rho == 0 or not nxt
            nxt = nxt + (loads(rho + 1) if rho < 7 else [])
            if rho == 1: nxt = nxt + ini
            if rho == 3: E.wait(lg=("I", 7))
            if rho == W2AT:
                assert not val
                assert not w2d
                E.wait(lg="w2w"); E("s_barrier")
            if rho == W2AT - 1: E("s_waitcnt vmcnt(0)")
        tau = q + dl
        a = FR[rho & 1] + q * 4; b = FR[rho & 1] + 32 + dl * 4; c = ACC + tau * 4
        E(f"v_mfma_f32_16x16x32_bf16 {vr(c)}, {vr(a)}, {vr(b)}, {vr(c) if tau in seen else '0'}")
        seen.add(tau); n0 = E.n
        if n + 1 < len(seq):
            r2, q2, d2 = seq[n + 1]
            if rho == 7 and n % 36 == 8: E.wait_all(vm=False)
            E.wait(lg=[("A", r2, q2), ("B", r2, d2)])
        k = 2
        if len(E.lg) - E.lg_done >= 10 and E.n == n0:
            E("s_waitcnt lgkmcnt(3)"); E.lg_done = len(E.lg) - 3
        if rho == W2AT - 1 and w2d and n % 3 == 2:
            E.lds(w2d.pop(0), "w2w"); continue
        if rho >= W2AT and not w2q and w2s and n % 4 == 1:
            w2s.pop(0)(); continue
        if nxt:
            nxt.pop(0)(); k = 1
            if nxt and (rho <= 1): nxt.pop(0)(); k = 0
        if rho == 7 and n % 36 >= 9:
            while nfin < 8 and lastn[nfin] + 8 <= n: fin += fin_tau(nfin); nfin += 1
        for _ in range(k):
            if rho >= 3 and val: E(val.pop(0))
            elif rho >= W2AT and w2q: w2q.pop(0)()
            elif fin: emit_fin(fin.pop(0))
    assert not val and not nxt and not w2q and not w2d
    while w2s: w2s.pop(0)()
    stamp()
    while fin: emit_fin(fin.pop(0))
    E("s_nop 7")
    while nfin < 8:
        for x in fin_tau(nfin): emit_fin(x)
        nfin += 1
    E.wait_all(vm=False); E("s_barrier")
    for j in range(8): E.lds(f"ds_read_b64_tr_b16 {vr(68+2*j,2)}, v3 offset:{j*512}", ("o", j))
    for j in range(8):
        E.wait(lg=("o", j))
        E(f"buffer_store_dwordx2 {vr(68+2*j,2)}, v4, {sWS}, s28 offen {HSC}")
        if j < 7: E("s_add_u32 s28, s28, 4096")
    stamp_out()
    E("s_endpgm")

    ns[0] = nsc
    E.lg = []; E.lg_done = 0
    E.vm, E.vm_done = list(vm_save[0]), vm_save[1]
    E("LF_help:")
    E("s_cmp_ge_u32 s5, 27\ns_cbranch_scc1 LF_h5")
    E("s_mul_i32 s6, s4, 9\ns_add_u32 s6, s6, s5\ns_sub_u32 s6, s6, 18")
    E(f"v_lshrrev_b32 v8, 3, v0\nv_mul_u32_u24 v8, 9216, v8\nv_and_b32 v9, 7, v0\nv_lshl_add_u32 v8, v9, 4, v8\ns_lshl_b32 s35, s6, 7")
    def dmaA(j): E.vmem(f"s_add_u32 m0, s34, {j*4096}\ns_nop 0\nbuffer_load_dwordx4 v8, s[60:63], s35 offen lds\ns_add_u32 s35, s35, {32*9216}", ("A", j))
    NA0 = O("na0", 0)
    for j in range(NA0): dmaA(j)
    E(f"s_lshl_b32 s20, s6, 2\ns_add_u32 s20, s20, {sw}\ns_mul_i32 s21, s20, 3641\ns_lshr_b32 s21, s21, 16\ns_mul_i32 s22, s21, 18\ns_sub_u32 s22, s20, s22")
    E(f"s_mul_i32 s51, s21, {WP_STRIDE}\ns_add_u32 s51, s51, {WP_OFF}\ns_lshl_b32 s52, s22, 7\ns_add_u32 s52, s52, {36*64}\ns_add_u32 s53, s52, 64")
    E(f"v_and_b32 v15, 15, v2\ns_lshl_b32 s54, s20, 5\nv_lshl_add_u32 v15, v15, 1, s54\nv_and_b32 v5, 3, v2\nv_lshlrev_b32 v4, 4, v2")
    E("s_load_dwordx16 s[16:31], s[32:33], s52\ns_load_dwordx4 s[40:43], s[32:33], s53")
    E(f"v_lshrrev_b32 v10, 4, v2\nv_lshlrev_b32 v10, 3, v10\nv_bfe_u32 v11, v2, 2, 2\nv_add_u32 v10, v10, v11\nv_lshlrev_b32 v10, 7, v10\nv_lshl_add_u32 v10, v5, 3, v10\ns_lshl_b32 s55, {sw}, 5\nv_add_u32 v10, s55, v10\nv_add_u32 v11, 65536, v10")
    for i in range(4): E(f"v_mov_b32 v{140+i}, 0x3f803f80")
    E.wait(vm="us"); pubflag("LF_pub2")
    stamp()
    E.vmem("global_load_ushort v15, v15, s[38:39]", "b1")
    for j in range(NA0, 18): dmaA(j)
    E("s_waitcnt lgkmcnt(0)")
    V1 = 16
    for st in range(3):
        E.wait(vm=("A", st * 6 + 5)); E("s_barrier")
        if st == 2: stamp()
        for ks in range(st * 6, st * 6 + 6):
            for h in range(2):
                o = ks * 4096 + h * 512
                E.lds(f"ds_read_b64_tr_b16 {vr(V1+4*ks+2*h,2)}, v{10 + (o >> 16)} offset:{o & 65535}", ("w1", ks))
        for ks in range(st * 6, st * 6 + 6):
            E.wait(lg=("w1", ks))
            E.vmem(f"s_add_u32 s55, s51, s{16+ks if ks < 16 else 40+ks-16}\nbuffer_store_dwordx4 {vr(V1+4*ks)}, v4, {sWS}, s55 offen {SC}", "st")
            E(f"v_mfma_f32_16x16x32_bf16 v[144:147], v[140:143], {vr(V1+4*ks)}, {'0' if ks == 0 else 'v[144:147]'}")
    E("s_add_u32 s55, s51, s42\nv_mov_b32 v150, 0\nv_mov_b32 v151, 0\ns_nop 5")
    E("v_cvt_pk_bf16_f32 v9, v144, v144\nv_and_b32 v9, 0xffff0000, v9\nv_or_b32 v148, v15, v9\nv_sub_f32 v8, v144, v9")
    E("v_cvt_pk_bf16_f32 v9, v8, v8\nv_and_b32 v9, 0xffff0000, v9\nv_sub_f32 v10, v8, v9\nv_cvt_pk_bf16_f32 v149, v8, v10")
    E(f"buffer_store_dwordx4 v[148:151], v4, {sWS}, s55 offen {SC}")
    stamp_out()
    E("s_endpgm")
    E("LF_h5:")
    ns[0] = nsc
    E("s_waitcnt vmcnt(0)"); pubflag("LF_pub3")
    stamp()
    if O("w2warm", 0):
        E(f"s_mul_i32 s20, s4, {18*36864}\ns_sub_u32 s21, s5, 27\ns_lshl_b32 s21, s21, 15\ns_add_u32 s20, s20, s21\nv_lshlrev_b32 v3, 7, v0")
        for i in range(4): E(f"buffer_load_dword v{16+i}, v3, s[64:67], s20 offen\ns_add_u32 s20, s20, {5*32768}")
    E("s_cmp_lg_u32 s5, 31\ns_cbranch_scc1 LF_nopf\nv_lshlrev_b32 v3, 7, v0\nv_min_u32 v3, L3_codeend-LF_codeend-4, v3\nv_add_u32 v3, LF_codeend-T_w, v3\nglobal_load_dword v253, v3, s[32:33]")
    E(f"s_lshl_b32 s20, s4, 14\ns_add_u32 s20, s20, {FL_OFF}\nv_lshlrev_b32 v3, 7, v0\nv_cmp_gt_u32 vcc, 128, v0\ns_and_saveexec_b64 s[56:57], vcc\ns_cbranch_execz LF_nofl\nbuffer_store_dword v251, v3, {sWS}, s20 offen sc1\nLF_nofl:\ns_mov_b64 exec, -1\nLF_nopf:")
    stamp_out()
    E("LF_end:\ns_endpgm")
    w1, w2 = frag_tables()
    E(".p2align 6\n.type T_w,@object\nT_w:")
    for j in range(4):
        for p in range(9):
            E(".long " + ", ".join(str(int(x) * 1024) for x in list(w2[j, p]) + [0] * 7))
    for t in range(18):
        E(".long " + ", ".join(str(int(x) * 1024) for x in list(w1[:, t]) + [0] * 13))
    E(".size T_w, .-T_w\nLF_codeend:")
    return E.text(), kd(name, 296, 102, 256)
```

```python
import sys, json, re
from layout import *
import gen_front, gen_k3
REF = "sequential_preLN__ssm_conv_s4d__dense_activation_squared_relu__prompt.s.ref"
def instr(b, d, k, swreg, endlab):
    lines = b.split("\n")
    i = [n for n, l in enumerate(lines) if l.endswith("_kernel:")][0]
    lines.insert(i + 1, "s_memrealtime s[100:101]")
    first = True
    for n, l in enumerate(lines):
        if l.startswith("s_cbranch_scc1 " + endlab) and first:
            lines[n] = f"s_cbranch_scc1 RT{k}_x"; first = False
        elif l == "s_endpgm": lines[n] = f"s_branch RT{k}"
    j = [n for n, l in enumerate(lines) if l.startswith(endlab + ":")][0] + 2
    epi = f"""RT{k}:
s_mov_b64 exec, -1
s_waitcnt vmcnt(0)
s_memrealtime s[98:99]
s_lshl_b32 s94, s2, 2
s_add_u32 s94, s94, {swreg}
s_lshl_b32 s94, s94, 3
s_add_u32 s94, s94, {TS_OFF + 0x40000 + k * 0x10000}
v_mov_b32 v0, 0
s_waitcnt lgkmcnt(0)
v_mov_b32 v2, s100
v_mov_b32 v3, s98
buffer_store_dwordx2 v[2:3], v0, s[8:11], s94 offen sc1
RT{k}_x:
s_endpgm""".split("\n")
    lines[j:j] = epi
    return "\n".join(lines), re.sub(r"next_free_sgpr \d+", "next_free_sgpr 102", d)
def gen_all(opt=None, stamps=False, final=False):
    opt = opt or {}
    b1, d1 = gen_front.gen_front(opt)
    b3, d3, ns, ideal = gen_k3.gen_k3(stamps=stamps, LA=opt.get("LA", 5), opt=opt)
    if opt.get("rt", 0):
        b1, d1 = instr(b1, d1, 0, "s3", "LF_end"); b3, d3 = instr(b3, d3, 1, "s20", "L3_end")
    hdr = open(REF).read().split("; Override launch")[0] if final else ""
    hdr += f"; @launch kernel=front_kernel grid=(256,1,1) block=(256,1,1) lds={gen_front.F_LDS}\n"
    hdr += f"; @launch kernel=mlp_kernel grid=(256,1,1) block=(256,1,1) lds={gen_k3.K3_LDS}\n"
    hdr += '.amdgcn_target "amdgcn-amd-amdhsa--gfx950"\n.text\n'
    return hdr + b1 + b3 + '.section .rodata,"a"\n' + d1 + d3, ns
if __name__ == "__main__":
    opt = json.loads(sys.argv[2]) if len(sys.argv) > 2 else {}
    out = sys.argv[3] if len(sys.argv) > 3 else REF[:-4]
    txt, ns = gen_all(opt, final=True)
    open(out, "w").write(txt)
    print("written", out, len(txt))
```

```python
import sys, json, re
from layout import *
import gen_front, gen_k3
REF = "sequential_preLN__ssm_conv_s4d__dense_activation_squared_relu__prompt.s.ref"
def instr(b, d, k, swreg, endlab):
    lines = b.split("\n")
    i = [n for n, l in enumerate(lines) if l.endswith("_kernel:")][0]
    lines.insert(i + 1, "s_memrealtime s[100:101]")
    first = True
    for n, l in enumerate(lines):
        if l.startswith("s_cbranch_scc1 " + endlab) and first:
            lines[n] = f"s_cbranch_scc1 RT{k}_x"; first = False
        elif l == "s_endpgm": lines[n] = f"s_branch RT{k}"
    j = [n for n, l in enumerate(lines) if l.startswith(endlab + ":")][0] + 2
    epi = f"""RT{k}:
s_mov_b64 exec, -1
s_waitcnt vmcnt(0)
s_memrealtime s[98:99]
s_lshl_b32 s94, s2, 2
s_add_u32 s94, s94, {swreg}
s_lshl_b32 s94, s94, 3
s_add_u32 s94, s94, {TS_OFF + 0x40000 + k * 0x10000}
v_mov_b32 v0, 0
s_waitcnt lgkmcnt(0)
v_mov_b32 v2, s100
v_mov_b32 v3, s98
buffer_store_dwordx2 v[2:3], v0, s[8:11], s94 offen sc1
RT{k}_x:
s_endpgm""".split("\n")
    if DBG and k == 1:
        epi = f"""RT{k}:
s_waitcnt vmcnt(0)
s_memrealtime s[98:99]
s_and_b32 s94, s2, 63
s_or_b32 s94, s94, s20
s_cmp_lg_u32 s94, 0
s_cbranch_scc1 RT{k}_x
s_mov_b64 exec, 1
s_load_dwordx2 s[94:95], s[0:1], 104
s_lshl_b32 s96, s2, 5
s_add_u32 s96, s96, {TS_OFF + 0x40000}
v_mov_b32 v0, 0
buffer_load_dwordx2 v[2:3], v0, s[8:11], s96 offen
s_lshr_b32 s96, s2, 2
v_mov_b32 v0, s96
s_waitcnt lgkmcnt(0) vmcnt(0)
v_mov_b32 v4, s100
v_mov_b32 v5, s98
v_sub_u32 v3, v3, v2
v_sub_u32 v4, v4, v2
v_sub_u32 v5, v5, v2
global_store_dwordx4 v0, v[2:5], s[94:95]
RT{k}_x:
s_endpgm""".split("\n")
    lines[j:j] = epi
    return "\n".join(lines), re.sub(r"next_free_sgpr \d+", "next_free_sgpr 102", d)
def gen_all(opt=None, stamps=False, final=False):
    opt = opt or {}
    b1, d1 = gen_front.gen_front(opt)
    b3, d3, ns, ideal = gen_k3.gen_k3(stamps=stamps, LA=opt.get("LA", 5), opt=opt)
    global DBG
    DBG = opt.get("rt", 0) == 2
    if opt.get("rt", 0):
        b1, d1 = instr(b1, d1, 0, "s3", "LF_end"); b3, d3 = instr(b3, d3, 1, "s20", "L3_end")
    hdr = open(REF).read().split("; Override launch")[0] if final else ""
    hdr += f"; @launch kernel=front_kernel grid=(256,1,1) block=(256,1,1) lds={gen_front.F_LDS}\n"
    hdr += f"; @launch kernel=mlp_kernel grid=(256,1,1) block=(256,1,1) lds={gen_k3.K3_LDS}\n"
    hdr += '.amdgcn_target "amdgcn-amd-amdhsa--gfx950"\n.text\n'
    return hdr + b1 + b3 + '.section .rodata,"a"\n' + d1 + d3, ns
if __name__ == "__main__":
    opt = json.loads(sys.argv[2]) if len(sys.argv) > 2 else {}
    out = sys.argv[3] if len(sys.argv) > 3 else REF[:-4]
    txt, ns = gen_all(opt, final=True)
    open(out, "w").write(txt)
    print("written", out, len(txt))
```

```python
class Em:
    def __init__(self):
        self.L = []
        self.vm = []; self.vm_done = 0
        self.lg = []; self.lg_done = 0
        self.n = 0
    def __call__(self, s):
        for x in s.split("\n"):
            x = x.strip()
            if not x: continue
            self.L.append(x)
            if not x.endswith(":") and not x.startswith((";", ".")): self.n += 1
    def vmem(self, s, tag=None):
        if len(self.vm) - self.vm_done >= 60:
            self("s_waitcnt vmcnt(56)"); self.vm_done = len(self.vm) - 56
        self(s); self.vm.append(tag)
    def lds(self, s, tag=None):
        if len(self.lg) - self.lg_done >= 14:
            self("s_waitcnt lgkmcnt(12)"); self.lg_done = len(self.lg) - 12
        self(s); self.lg.append(tag)
    def wait(self, vm=None, lg=None):
        parts = []
        if vm is not None:
            tags = vm if isinstance(vm, (list, set)) else [vm]
            idx = max(len(self.vm) - 1 - self.vm[::-1].index(t) for t in tags)
            if idx + 1 > self.vm_done:
                n = len(self.vm) - 1 - idx; assert n < 62
                parts.append(f"vmcnt({n})"); self.vm_done = len(self.vm) - n
        if lg is not None:
            tags = lg if isinstance(lg, (list, set)) else [lg]
            idx = max(len(self.lg) - 1 - self.lg[::-1].index(t) for t in tags)
            if idx + 1 > self.lg_done:
                n = len(self.lg) - 1 - idx; assert n < 15
                parts.append(f"lgkmcnt({n})"); self.lg_done = len(self.lg) - n
        if parts: self("s_waitcnt " + " ".join(parts))
    def wait_all(self, vm=True, lg=True):
        p = []
        if vm: p.append("vmcnt(0)"); self.vm_done = len(self.vm)
        if lg: p.append("lgkmcnt(0)"); self.lg_done = len(self.lg)
        self("s_waitcnt " + " ".join(p))
    def text(self): return "\n".join(self.L) + "\n"

def kd(name, vgpr, sgpr, accum):
    return f""".p2align 6
.amdhsa_kernel {name}
  .amdhsa_next_free_vgpr {vgpr}
  .amdhsa_next_free_sgpr {sgpr}
  .amdhsa_accum_offset {accum}
  .amdhsa_group_segment_fixed_size 0
  .amdhsa_kernarg_size 120
  .amdhsa_user_sgpr_count 2
  .amdhsa_user_sgpr_kernarg_segment_ptr 1
  .amdhsa_system_sgpr_workgroup_id_x 1
.end_amdhsa_kernel
"""
def vr(b, n=4): return f"v[{b}:{b+n-1}]"
def ar(b, n=4): return f"a[{b}:{b+n-1}]"

import re
_RE = re.compile(r"v\[(\d+):(\d+)\]|v(\d+)")
def _regs(tok):
    out = set()
    for m in _RE.finditer(tok):
        if m.group(3) is not None: out.add(int(m.group(3)))
        else: out.update(range(int(m.group(1)), int(m.group(2)) + 1))
    return out
_TRANS = ("v_exp_f32", "v_log_f32", "v_rcp_f32", "v_rsq_f32", "v_sqrt_f32", "v_sin_f32", "v_cos_f32")
def fix_hazards(L):
    out = []; hist = []
    for x in L:
        if not isinstance(x, str):
            out.append(x); hist.append((set(), False)); continue
        op, _, rest = x.partition(" ")
        ops = rest.split(",")
        isv = op.startswith("v_")
        dst = _regs(ops[0]) if isv and not op.startswith("v_cmp") else set()
        src = _regs(",".join(ops[1:])) if isv else _regs(rest)
        if op.startswith("v_permlane"): src |= dst; dst = dst | _regs(ops[1])
        if op in ("v_fmac_f32",): src |= dst
        need = 0
        if "row_" in x or op.startswith("v_permlane"):
            for d in (1, 2):
                if len(hist) >= d and hist[-d][0] & src: need = max(need, 3 - d)
        if len(hist) >= 1 and hist[-1][1] and hist[-1][0] & src: need = max(need, 1)
        if need:
            out.append(f"s_nop {need-1}"); hist += [(set(), False)] * need
        out.append(x); hist.append((dst, op in _TRANS))
    return out
def weave(streams, ratio=None):
    out = []
    streams = [list(x) for x in streams]
    while any(streams):
        for x in streams:
            if x: out.append(x.pop(0))
    return out
```

```python
import struct
from layout import *
from emit import *
LOG2E, INV2PI = "0x3fb8aa3b", "0x3e22f983"
TROW = 528
YB = 29 * TROW
TSZ = 61 * TROW
UB = (4 * TSZ + 255) // 256 * 256
F_LDS = UB + 32768
W2L = UB - 4096
REPS = 8320
RS = 2368
def fhex(p): return hex(struct.unpack('<I', struct.pack('<f', float(p)))[0])
def sp(s): return [x for x in s.split("\n") if x.strip()]

def gen_front(name, opt=None):
    opt = opt or {}
    O = lambda k, d: opt.get(k, d)
    E = Em()
    sWS = "s[8:11]"; sw = "s3"; sTag = "s12"
    ns = [0]
    NT = O("nt", "nt"); NX = O("nx", "nt")
    def stamp():
        if O("fst", 0):
            E(f"{'s_memtime' if O('fst', 0) == 2 else 's_memrealtime'} s[98:99]"); E.wait_all(vm=False); E(f"v_accvgpr_write_b32 a{240+ns[0]}, s98"); ns[0] += 1
    def stamp_out():
        if O("fst", 0):
            stamp()
            E(f"s_lshl_b32 s4, s2, 2\ns_add_u32 s4, s4, {sw}\ns_lshl_b32 s4, s4, 6\ns_add_u32 s4, s4, {TS_OFF + 0x80000}")
            for i in range(ns[0]): E(f"buffer_store_dword a{240+i}, v251, {sWS}, s4 offen offset:{i*4}")
    def emit(L):
        for x in fix_hazards(L):
            if not isinstance(x, str): x()
            elif x.startswith("ds_"): E.lds(x, "w")
            else: E(x)
    def ln_valu(R, soff):
        X = R + 10; S = R + 28; T = R + 30; Q = R + 32; P = R + 36
        L = []
        for i in range(9): L += [f"v_lshlrev_b32 v{X+2*i}, 16, v{R+i}", f"v_and_b32 v{X+2*i+1}, 0xffff0000, v{R+i}"]
        for i in range(9):
            x = vr(X + 2 * i, 2)
            if i == 1: L.append(f"v_pk_add_f32 {vr(S,2)}, {vr(X,2)}, {x}")
            elif i > 1: L.append(f"v_pk_add_f32 {vr(S,2)}, {vr(S,2)}, {x}")
            L.append(f"v_pk_fma_f32 {vr(Q,2)}, {x}, {x}, {vr(Q,2)}" if i else f"v_pk_mul_f32 {vr(Q,2)}, {x}, {x}")
        L += [f"v_add_f32 v{S}, v{S}, v{S+1}", f"v_add_f32 v{Q}, v{Q}, v{Q+1}"]
        for sh in (8, 4, 2, 1): L += [f"v_add_f32 v{S}, v{S}, v{S} row_ror:{sh}", f"v_add_f32 v{Q}, v{Q}, v{Q} row_ror:{sh}"]
        L += sp(f"""v_mov_b32 v{S+1}, v{S}
v_mov_b32 v{Q+1}, v{Q}
v_permlane16_swap_b32 v{S}, v{S+1}
v_permlane16_swap_b32 v{Q}, v{Q+1}
v_add_f32 v{S}, v{S}, v{S+1}
v_add_f32 v{Q}, v{Q}, v{Q+1}
v_mul_f32 v{S}, 0x3ae38e39, v{S}
v_mul_f32 v{Q}, 0x3ae38e39, v{Q}
v_fma_f32 v{Q}, -v{S}, v{S}, v{Q}
v_max_f32 v{Q}, 0, v{Q}
v_cvt_pk_bf16_f32 v{Q}, v{Q}, v{S}
v_and_b32 v{S}, 0xffff0000, v{Q}
v_lshlrev_b32 v{Q}, 16, v{Q}
v_add_f32 v{Q}, 0x3727c5ac, v{Q}
v_cvt_pk_bf16_f32 v{Q}, v{Q}, v{Q}
v_lshlrev_b32 v{Q}, 16, v{Q}
v_sqrt_f32 v{Q}, v{Q}""")
        for i in range(9):
            L += [f"v_pk_add_f32 {vr(P+2*i,2)}, {vr(X+2*i,2)}, {vr(S,2)} op_sel_hi:[1,0] neg_lo:[0,1] neg_hi:[0,1]"]
            if i == 0: L += [f"v_cvt_pk_bf16_f32 v{Q}, v{Q}, v{Q}", f"v_lshlrev_b32 v{Q}, 16, v{Q}", f"v_rcp_f32 v{Q}, v{Q}"]
        if O("uexact", 1):
            for i in range(9): L.append(f"v_cvt_pk_bf16_f32 v{P+2*i+1}, v{P+2*i}, v{P+2*i+1}")
            for i in range(9): L += [f"v_lshlrev_b32 v{P+2*i}, 16, v{P+2*i+1}", f"v_and_b32 v{P+2*i+1}, 0xffff0000, v{P+2*i+1}"]
        for i in range(9): L.append(f"v_pk_mul_f32 {vr(P+2*i,2)}, {vr(P+2*i,2)}, {vr(Q,2)} op_sel_hi:[1,0]")
        for i in range(18):
            L.append(f"v_cvt_pk_bf16_f32 v{P+i}, v{P+i}, v{X+i}")
            if i in (3, 7, 11, 15): L.append(f"ds_write_b128 v216, {vr(P+i-3)} offset:{soff + (i//8)*1024 + ((i//4)&1)*16}")
        L.append(f"ds_write_b64 v217, {vr(P+16,2)} offset:{soff + 2048}")
        return L
    def ln_loads(R, sreg):
        E(f"buffer_load_dwordx4 {vr(R)}, v6, s[56:59], {sreg} offen {NX}\nbuffer_load_dwordx4 {vr(R+4)}, v6, s[56:59], {sreg} offen offset:512 {NX}\nbuffer_load_dword v{R+8}, v7, s[56:59], {sreg} offen offset:1024 {NX}")
    def ln_addr(base):
        E(f"v_mul_u32_u24 v5, {RS}, v3\nv_add_u32 v5, {base}, v5\nv_lshl_add_u32 v216, v4, 5, v5\nv_lshl_add_u32 v217, v4, 3, v5")
        E(f"v_bfe_u32 v3, v2, 2, 2\nv_mul_u32_u24 v3, {RS}, v3\nv_lshrrev_b32 v4, 4, v0\nv_lshl_add_u32 v3, v4, 5, v3\nv_and_b32 v4, 3, v2\nv_lshl_add_u32 v3, v4, 3, v3\nv_add_u32 v218, {base}, v3")
        E(f"v_cmp_gt_u32 vcc, 128, v0\nv_mov_b32 v211, 0x40000000\ns_nop 0\nv_cndmask_b32 v211, v211, v210, vcc")
    def ln_rd(R, soff):
        for j in range(5):
            E.lds(f"ds_read_b64_tr_b16 {vr(R+4*j,2)}, v218 offset:{soff+j*512}", (R, j)); E.lds(f"ds_read_b64_tr_b16 {vr(R+2+4*j,2)}, v218 offset:{soff+j*512+4*RS}", (R, j))
    def ln_st(R, sreg):
        for j in range(5):
            E.wait(lg=(R, j))
            E.vmem(f"buffer_store_dwordx4 {vr(R+4*j)}, v{210 if j < 4 else 211}, {sWS}, {sreg} offen sc1", "us")
            if j < 4: E(f"s_add_u32 {sreg}, {sreg}, 4096")
    W1F = sp(f"""s_and_b32 s64, s2, 6
s_lshl_b32 s64, s64, 1
s_bfe_u32 s65, s2, 0x20003
s_add_u32 s64, s64, s65
s_mul_i32 s64, s64, 9
s_lshr_b32 s64, s64, 1
s_mul_i32 s64, s64, 3
s_lshr_b32 s64, s64, 1
s_lshl_b32 s64, s64, 5
s_add_u32 s64, s64, {F2_OFF + 144*32}
s_and_b32 s65, s2, {O("nrep", 8)-1}
s_mul_i32 s65, s65, {REPS}
s_add_u32 s64, s64, s65
s_add_u32 s65, s65, {F2_OFF}
v_and_b32 v231, 7, v0
v_lshlrev_b32 v231, 5, v231""")
    W1L = f"buffer_load_dword v230, v231, {sWS}, s64 offen sc1"
    def mktag(): E(f"s_mul_i32 {sTag}, {sTag}, 0x9e3779b1\ns_add_u32 {sTag}, {sTag}, 0x7f4a7c15\nv_mov_b32 v212, {sTag}")
    NREP = O("nrep", 8); FS = O("fs", 5)
    def pub(lab, sreg):
        E(f"v_mul_u32_u24 v213, {REPS}, v0\ns_barrier\ns_cmp_lg_u32 {sw}, 0\ns_cbranch_scc1 {lab}\ns_mov_b64 exec, {(1 << NREP) - 1}\nbuffer_store_dword v212, v213, {sWS}, {sreg} offen sc1\ns_mov_b64 exec, -1\n{lab}:")

    E(f".globl {name}\n.p2align 8\n.type {name},@function\n{name}:\nLF_codestart:")
    E(f"s_cmp_ge_u32 s2, 256\ns_cbranch_scc1 L3_end")
    E("s_load_dwordx16 s[16:31], s[0:1], 0\ns_load_dwordx8 s[36:43], s[0:1], 64\ns_load_dwordx2 s[44:45], s[0:1], 96\ns_load_dwordx2 s[8:9], s[0:1], 112")
    E("s_getpc_b64 s[32:33]\nLF_pc:")
    E("v_lshlrev_b32 v3, 7, v0\nv_min_u32 v3, LF_codeend-LF_pc-4, v3\nglobal_load_dword v255, v3, s[32:33]")
    E(f"v_lshrrev_b32 v1, 6, v0\nv_and_b32 v2, 63, v0\ns_mov_b32 s10, {0x10000000 - (O('wsbase', 0) << 20)}\nv_readfirstlane_b32 {sw}, v1\ns_mov_b32 s11, 0x20000")
    E(f"s_and_b32 s4, s2, 7\ns_lshr_b32 s5, s2, 3\ns_mov_b32 s58, {2048*1152}\ns_mov_b32 s59, 0x20000\ns_mul_i32 s35, s2, {8*1152}")
    E(f"v_lshrrev_b32 v3, 5, v0\nv_and_b32 v4, 31, v2\nv_mul_u32_u24 v5, 1152, v3\nv_lshl_add_u32 v6, v4, 4, v5\nv_lshl_add_u32 v7, v4, 2, v5")
    E(f"v_lshlrev_b32 v210, 4, v0\nv_mov_b32 v251, 0\ns_lshl_b32 s34, {sw}, 10\ns_mov_b32 s62, {576*4608*2}\ns_mov_b32 s63, 0x20000")
    E(f"s_add_u32 s32, s32, T_w-LF_pc\ns_addc_u32 s33, s33, 0\ns_lshl_b32 s15, s2, 5\ns_add_u32 s15, s15, {U2_OFF}\ns_mul_i32 s13, s2, 18432\ns_add_u32 s13, s13, {US_OFF}")
    E("s_cmp_ge_u32 s5, 18\ns_cbranch_scc1 LF_help")
    def common():
        E("s_waitcnt lgkmcnt(0)")
        stamp()
        E("s_mov_b32 s56, s16\ns_mov_b32 s57, s17")
        if O("wsbase", 0): E(f"s_add_u32 s8, s8, {O('wsbase', 0) << 20}\ns_addc_u32 s9, s9, 0")
    def ldtag(): E(f"s_add_u32 s46, s8, {EP_OFF}\ns_addc_u32 s47, s9, 0\ns_load_dword {sTag}, s[46:47], 0")
    E(f"s_mul_i32 s6, s4, 18\ns_add_u32 s6, s6, s5\ns_lshl_b32 s7, s6, 2\ns_add_u32 s7, s7, {sw}")
    E("s_lshl_b32 s14, s7, 8\nv_lshl_add_u32 v200, v2, 2, s14\ns_lshl_b32 s14, s7, 1\nv_mov_b32 v201, s14")
    common()
    LR = 112
    ln_loads(LR, "s35")
    E("global_load_dword v202, v200, s[18:19]\nglobal_load_dword v203, v200, s[20:21]\nglobal_load_ushort v206, v201, s[26:27]")
    E("global_load_dword v204, v200, s[22:23]\nglobal_load_dword v205, v200, s[24:25]\nglobal_load_ushort v207, v201, s[28:29]")
    ldtag()
    ln_addr(UB)
    AB, BB = 232, 240
    E(f"s_mul_i32 s14, {sw}, {TSZ}\nv_lshl_add_u32 v3, v2, 3, s14\ns_mov_b32 s64, {LOG2E}\ns_mov_b32 s65, {INV2PI}")
    E(f"v_lshrrev_b32 v4, 3, v2\nv_and_b32 v5, 7, v2\nv_lshl_add_u32 v4, v4, 5, v5\nv_lshlrev_b32 v214, 5, v4\ns_lshl_b32 s48, {sw}, 8\ns_add_u32 s48, s48, {U2_OFF}\ns_and_b32 s49, s2, {NREP-1}\ns_mul_i32 s49, s49, {REPS}\ns_add_u32 s48, s48, s49")
    E("v_lshrrev_b32 v215, 3, v0\nv_mul_u32_u24 v215, 18432, v215\nv_lshrrev_b32 v4, 4, v0\nv_xor_b32 v4, v4, v0\nv_and_b32 v4, 7, v4\nv_lshl_add_u32 v215, v4, 4, v215")
    E(f"s_lshl_b32 s49, s6, 7\ns_add_u32 s49, s49, {US_OFF}")
    E(f"v_and_b32 v5, 31, v2\nv_mul_u32_u24 v6, {TROW}, v5\nv_lshrrev_b32 v7, 5, v2\nv_lshl_add_u32 v6, v7, 4, v6\nv_add_u32 v6, s14, v6")
    E(f"v_sub_u32 v5, 255, v5\nv_lshl_add_u32 v5, v5, 4, s14\nv_and_b32 v7, 1, v2\nv_cmp_eq_u32 s[52:53], 1, v7\nv_cmp_lt_u32 vcc, 31, v2")
    for sl, (b0, b1) in enumerate(zip([0, 1024, 1280, 1536], [256, 512, 768, 1792])):
        E(f"v_mov_b32 v7, {2*b0}\nv_mov_b32 v8, {2*b1}\nv_cndmask_b32 v7, v7, v8, vcc\nv_sub_u32 v{220+sl}, v5, v7")
    E("v_and_b32 v7, 3, v2\nv_lshl_add_u32 v7, v7, 4, s14\nv_add_u32 v8, 4096, v7\nv_add_u32 v9, 8256, v7\nv_cmp_gt_u32 vcc, 4, v2\nv_cmp_eq_u32 s[54:55], 0, v2\ns_nop 0\nv_cndmask_b32 v224, v8, v9, vcc")
    E(f"v_and_b32 v8, 15, v2\nv_lshrrev_b32 v9, 4, v2\nv_lshlrev_b32 v10, 3, v9\nv_sub_u32 v10, v10, v8\nv_add_u32 v10, 2031, v10\nv_and_b32 v11, 1, v10\nv_mul_u32_u24 v11, {4160//2+1}, v11\nv_add_u32 v10, v10, v11\nv_lshl_add_u32 v10, v10, 1, s14")
    for q in range(8): E(f"v_subrev_u32 v{AB+q}, {512*q + 448}, v10")
    E(f"v_lshl_add_u32 v11, v8, 1, v9\ns_lshl_b32 s50, {sw}, 1")
    assert (UB // 128) % 16 == 0
    for rho in range(8):
        E(f"v_add_u32 v7, {(UB - 4096) // 128 + 30 - 4*rho}, v11\nv_bfe_u32 v10, v7, 1, 3\nv_xor_b32 v10, s50, v10\nv_lshlrev_b32 v10, 4, v10\nv_lshl_add_u32 v{BB+rho}, v7, 7, v10")
    E(f"v_lshrrev_b32 v7, 1, v9\nv_lshl_add_u32 v7, v8, 1, v7\nv_and_b32 v10, 7, v8\nv_xor_b32 v10, s50, v10\nv_lshlrev_b32 v10, 4, v10\nv_lshl_add_u32 v248, v7, 7, v10")
    E(f"v_and_b32 v10, 1, v9\nv_lshl_add_u32 v248, v10, 3, v248\nv_add_u32 v248, {UB}, v248\nv_xor_b32 v249, 16, v248")
    E("v_lshlrev_b32 v252, 4, v8\nv_lshl_add_u32 v252, v9, 2, v252\nv_add_u32 v252, s14, v252")
    E(f"v_bfe_u32 v7, v2, 2, 2\nv_mul_u32_u24 v7, {TSZ}, v7\nv_lshrrev_b32 v10, 4, v0\nv_lshl_add_u32 v7, v10, 5, v7\nv_and_b32 v10, 3, v2\nv_lshl_add_u32 v253, v10, 3, v7")
    E(f"s_lshl_b32 s51, s6, 14\ns_add_u32 s51, s51, {HB_OFF}\ns_mov_b32 s60, s40\ns_mov_b32 s61, s41\ns_mul_i32 s35, s6, 36864")
    E(f"s_mul_i32 s21, s6, 7282\ns_lshr_b32 s21, s21, 16\ns_mul_i32 s22, s21, 9\ns_sub_u32 s22, s6, s22\ns_lshr_b32 s67, s21, 2")
    E(f"s_sub_u32 s24, s21, {sw}\ns_and_b32 s24, s24, 3\ns_mul_i32 s25, s24, 9\ns_add_u32 s25, s25, s22\ns_lshl_b32 s25, s25, 6")
    E(f"s_load_dwordx8 s[16:23], s[32:33], s25\ns_add_u32 s25, s25, 32\ns_load_dword s24, s[32:33], s25")
    E(f"s_lshl_b32 s26, s67, 2\ns_add_u32 s26, s26, {sw}\ns_mul_i32 s26, s26, {WP_STRIDE}\ns_add_u32 s26, s26, {WP_OFF}")
    E(f"v_lshrrev_b32 v7, 2, v2\nv_mul_u32_u24 v7, 1152, v7\ns_mul_i32 s28, {sw}, 288\ns_add_u32 s28, s28, {W2L}\nv_add_u32 v7, s28, v7\nv_lshl_add_u32 v228, v10, 3, v7\nv_lshl_add_u32 v229, v10, 4, v7")
    def cexp2(dst, p, t):
        ph = fhex(p)
        return [f"v_mul_f32 v{t}, {ph}, v14", f"v_mul_f32 v{t+2}, {ph}, v15", f"v_mul_f32 v{t+1}, {ph}, v16", f"v_mul_f32 v{t+3}, {ph}, v17",
                f"v_exp_f32 v{t}, -v{t}", f"v_exp_f32 v{t+2}, -v{t+2}", f"v_fract_f32 v{t+1}, v{t+1}", f"v_fract_f32 v{t+3}, v{t+3}",
                f"v_cos_f32 v{dst}, v{t+1}", f"v_sin_f32 v{dst+1}, v{t+1}", f"v_cos_f32 v{dst+2}, v{t+3}", f"v_sin_f32 v{dst+3}, v{t+3}",
                f"v_pk_mul_f32 {vr(dst,2)}, {vr(dst,2)}, {vr(t,2)} op_sel_hi:[1,0]", f"v_pk_mul_f32 {vr(dst+2,2)}, {vr(dst+2,2)}, {vr(t+2,2)} op_sel_hi:[1,0]"]
    def cmul2(dst, a, w, t):
        return [f"v_pk_mul_f32 {vr(t,2)}, {vr(a,2)}, {vr(w,2)} op_sel:[0,0] op_sel_hi:[0,1]", f"v_pk_mul_f32 {vr(t+2,2)}, {vr(a+2,2)}, {vr(w+2,2)} op_sel:[0,0] op_sel_hi:[0,1]",
                f"v_pk_fma_f32 {vr(dst,2)}, {vr(a,2)}, {vr(w,2)}, {vr(t,2)} op_sel:[1,1,0] op_sel_hi:[1,0,1] neg_lo:[1,0,0]",
                f"v_pk_fma_f32 {vr(dst+2,2)}, {vr(a+2,2)}, {vr(w+2,2)}, {vr(t+2,2)} op_sel:[1,1,0] op_sel_hi:[1,0,1] neg_lo:[1,0,0]"]
    def put(off, r, neg, t):
        n = '-' if neg else ''
        return [f"v_cvt_pk_bf16_f32 v{t}, v{r}, {n}v{r+1}", f"v_cvt_pk_bf16_f32 v{t+1}, v{r+2}, {n}v{r+3}", f"ds_write_b64 v3, {vr(t,2)} offset:{off}"]
    W8, YA, YBr, E1, E256, E2, E4, XA_, XBc, XT = 32, 36, 40, 44, 48, 52, 56, 60, 64, 68
    TT = [72, 80, 88, 96]
    XB1, XU = 104, 108
    Z = sp("""v_lshlrev_b32 v14, 16, v202
v_and_b32 v15, 0xffff0000, v202
v_lshlrev_b32 v12, 16, v206
v_lshlrev_b32 v16, 16, v203
v_and_b32 v17, 0xffff0000, v203
v_mul_f32 v14, s64, v14
v_mul_f32 v15, s64, v15
v_mul_f32 v12, s64, v12
v_exp_f32 v14, v14
v_exp_f32 v15, v15
v_exp_f32 v12, v12
v_lshlrev_b32 v250, 16, v207
v_cvt_pk_bf16_f32 v15, v14, v15
v_cvt_pk_bf16_f32 v12, v12, v12
v_lshlrev_b32 v14, 16, v15
v_and_b32 v15, 0xffff0000, v15
v_lshlrev_b32 v12, 16, v12
v_pk_mul_f32 v[14:15], v[14:15], v[12:13] op_sel_hi:[1,0]
v_pk_mul_f32 v[16:17], v[16:17], v[12:13] op_sel_hi:[1,0]
v_mul_f32 v14, s64, v14
v_mul_f32 v15, s64, v15
v_mul_f32 v16, s65, v16
v_mul_f32 v17, s65, v17""")
    Z += weave([cexp2(W8, 8, TT[0]), cexp2(YBr, 128, TT[1]), cexp2(E1, 1, TT[2]), cexp2(E256, 256, TT[3])])
    Z += ["v_add_f32 v12, v12, v12", f"v_lshlrev_b32 v{XA_}, 16, v204", f"v_lshlrev_b32 v{XA_+1}, 16, v205", f"v_and_b32 v{XA_+2}, 0xffff0000, v204", f"v_and_b32 v{XA_+3}, 0xffff0000, v205"]
    Z += [f"v_pk_mul_f32 {vr(XA_+i,2)}, {vr(XA_+i,2)}, v[12:13] op_sel_hi:[1,0]" for i in (0, 2)]
    rowof = {}
    for v, h in enumerate(H0): rowof[h] = krow(0, v)
    for v, h in enumerate(H1): rowof[h] = krow(1, v)
    S0 = [f"v_mov_b32 v{TT[0]+4}, 0x3f80", f"v_mov_b32 v{TT[0]+5}, 0x3f80", f"ds_write_b64 v3, {vr(TT[0]+4,2)} offset:{YB}"] + put(YB + TROW, W8, 0, TT[0] + 6)
    src = W8
    for k in range(2, 16):
        S0 += cmul2(YA, src, W8, TT[0]) + put(YB + k * TROW, YA, 0, TT[0] + 4 + 2 * (k & 1)); src = YA
    S1 = put(YB + 16 * TROW, YBr, 0, TT[1] + 4)
    for k in range(17, 32): S1 += cmul2(YBr, YBr, W8, TT[1]) + put(YB + k * TROW, YBr, 0, TT[1] + 4 + 2 * (k & 1))
    S2 = cmul2(XB1, XA_, E256, TT[2]) + put(rowof[256] * TROW, XB1, 1, TT[2] + 4)
    srcb = XB1
    for k in range(2, 8):
        b = 256 * k
        S2 += cmul2(XBc, srcb, E256, TT[2]) + put(rowof[b] * TROW, XBc, 1, TT[2] + 6); srcb = XBc
        st, reg, cnt = (4, E4, 2) if k < 4 else (8, W8, 1)
        s_ = XBc
        for i in range(1, cnt + 1):
            S2 += cmul2(XT, s_, reg, TT[2]) + put(rowof[b + st * i] * TROW, XT, 1, TT[2] + 4); s_ = XT
    S3 = cmul2(E2, E1, E1, TT[3]) + cmul2(E4, E2, E2, TT[3]) + put(rowof[0] * TROW, XA_, 1, TT[3] + 4)
    s_ = XA_
    for k in range(1, 9):
        S3 += cmul2(XU, s_, E1, TT[3]) + put(rowof[k] * TROW, XU, 1, TT[3] + 4 + 2 * (k & 1)); s_ = XU
    s_ = XB1
    for i in range(1, 5):
        S3 += cmul2(XU, s_, E2, TT[3]) + put(rowof[256 + 2 * i] * TROW, XU, 1, TT[3] + 4 + 2 * (i & 1)); s_ = XU
    K = weave([S0, S1, S2, S3])
    E("s_waitcnt vmcnt(6)")
    stamp()
    LN = ln_valu(LR, 0)
    n1 = 35; nz = O("nz", 24)
    emit(LN[:n1] + ["s_waitcnt vmcnt(0)"] + weave([LN[n1:n1+nz], Z[:nz]]) + LN[n1+nz:] + Z[nz:nz+10])
    Z = Z[nz+10:]
    E.wait_all(vm=False); E("s_barrier")
    ln_rd(176, 0); mktag()
    emit(Z[:14]); Z = Z[14:]
    ln_st(176, "s13")
    stamp()
    K = Z + K
    FLAG_AT, POLL_AT, CHK_AT = O("flag_at", 150), O("poll_at", 330), O("chk_at", 450)
    def check_dma():
        stamp()
        E("s_mov_b32 s66, 0\nLF_poll:\ns_waitcnt vmcnt(0)")
        E(f"v_cmp_ne_u32 vcc, {sTag}, v213\ns_cbranch_vccz LF_pollok\ns_add_u32 s66, s66, 1\ns_cmp_ge_u32 s66, 0x40000\ns_cbranch_scc1 LF_pollok")
        E(f"buffer_load_dword v213, v214, {sWS}, s48 offen sc1\ns_branch LF_poll\nLF_pollok:")
        stamp()
        for j in range(8):
            E(f"s_add_u32 m0, s34, {UB + j*4096}\ns_nop 0\nbuffer_load_dwordx4 v215, {sWS}, s49 offen sc1 lds\ns_add_u32 s49, s49, {32*18432}")
    if O("verbose", 0): print("K len", len(K))
    CHK_AT = min(CHK_AT, len(K))
    K.insert(CHK_AT, check_dma)
    K.insert(POLL_AT, lambda: E(f"buffer_load_dword v213, v214, {sWS}, s48 offen sc1"))
    K.insert(FLAG_AT, lambda: (E("s_waitcnt vmcnt(0)"), pub("LF_pub1", "s15")))
    emit(K)
    NB = 6
    def rd(s):
        b = 112 + (s % NB) * 8
        E.lds(f"ds_read_b128 {vr(b)}, v6 offset:{s*32}", ("t", s)); E.lds(f"ds_read_b128 {vr(b+4)}, v6 offset:{YB+s*32}", ("t", s))
    for s in range(NB): rd(s)
    stamp()
    A = 16
    E(f"v_mov_b32 v8, 0\nv_mov_b32 v9, 0\nv_mov_b32 v10, 0\nv_mov_b32 v11, 0\nv_lshlrev_b32 v7, 4, v2\nv_add_u32 v7, {UB - 4096}, v7")
    for s in range(16):
        b = 112 + (s % NB) * 8
        E.wait(lg=("t", s))
        E(f"v_mfma_f32_32x32x16_bf16 {vr(A,16)}, {vr(b)}, {vr(b+4)}, {'0' if s == 0 else vr(A,16)}")
        if s + NB < 16: rd(s + NB)
    E(f"s_cmp_lg_u32 {sw}, 3\ns_cbranch_scc1 LF_nozero")
    for i in range(4): E(f"ds_write_b128 v7, v[8:11] offset:{i*1024}")
    E("LF_nozero:\ns_nop 7")
    R1 = [0, 0, 1, 2, 2, 2, 3, 4, 4]; R2 = [0, 0, 0, 1, 1, 1, 2, 2, 2]
    def slots(half):
        H = H0 if half == 0 else H1
        out = []
        for base in ([0, 1024, 1280, 1536] if half == 0 else [256, 512, 768, 1792]):
            v0 = H.index(base)
            if base == 0: m = [A + v0 + i for i in range(9)]
            elif base == 256: m = [A + v0 + i for i in R1]
            elif base < 1024: m = [A + v0 + i for i in R2]
            else: m = [A + v0] * 4 + ['T'] + [A + v0 + 1] * 4
            out.append((base, m, A + v0))
        return out
    for half in range(2):
        E("s_mov_b32 exec_lo, -1\ns_mov_b32 exec_hi, 0" if half == 0 else "s_mov_b32 exec_lo, 0\ns_mov_b32 exec_hi, -1")
        for sl, (base, m, g0) in enumerate(slots(half)):
            if 'T' in m:
                E(f"v_cndmask_b32 v15, v{g0}, v{g0+1}, s[52:53]")
                m = [15 if x == 'T' else x for x in m]
            for i in range(4):
                for dst, x, y in ((96+sl*8+i, m[7-2*i], m[6-2*i]), (100+sl*8+i, m[8-2*i], m[7-2*i])):
                    E(f"v_cvt_pk_bf16_f32 v{dst}, v{x}, v{y}")
    E("s_mov_b64 exec, -1")
    for sl in range(4):
        E(f"ds_write_b128 v{220+sl}, {vr(96+sl*8)}\nds_write_b128 v{220+sl}, {vr(100+sl*8)} offset:4160")
    E(f"v_cvt_pk_bf16_f32 v8, v{A}, v9\nv_cndmask_b32 v8, 0, v8, s[54:55]\ns_mov_b64 exec, 0xff\nds_write_b128 v224, v[8:11]\ns_mov_b64 exec, -1")
    stamp()
    ACC = 36; FR = [68, 132]; INI = 196
    E("v_mov_b32 v4, v210")
    E.wait_all(); E("s_barrier")
    stamp()
    def loadA(rho, q, h):
        b = FR[rho & 1] + q * 4; o = 16 * (7 - rho)
        E.lds(f"ds_read2_b32 {vr(b+2*h,2)}, v{AB+q} offset0:{o+2*h} offset1:{o+2*h+1}", ("A", rho, q))
    def loadB(rho, dl):
        b = FR[rho & 1] + 32 + dl * 4
        E.lds(f"ds_read_b128 {vr(b)}, v{BB+rho} offset:{dl*4096}", ("B", rho, dl))
    def loads(rho):
        L = []
        for i in range(8):
            L += [lambda i=i: loadA(rho, i, 0), lambda i=i: loadA(rho, i, 1), lambda i=i: loadB(rho, i)]
        return L
    order = sorted([(q, dl) for q in range(8) for dl in range(8) if q + dl <= 7], key=lambda x: (max(x), x[0] + x[1]))
    seq = []
    for rho in range(8):
        for (q, dl) in (order if rho < 7 else sorted(order, key=lambda x: (x[0] + x[1], x[0]))): seq.append((rho, q, dl))
    pre = loads(0)
    for _ in range(12): pre.pop(0)()
    ini = []
    for tau in range(8):
        ini.append(lambda tau=tau: E.lds(f"ds_read_b64 {vr(INI+tau*4,2)}, v248 offset:{tau*4096}", ("I", tau)))
        ini.append(lambda tau=tau: E.lds(f"ds_read_b64 {vr(INI+tau*4+2,2)}, v249 offset:{tau*4096}", ("I", tau)))
    val = []
    for tau in range(8):
        r = INI + tau * 4
        val += [f"v_lshlrev_b32 v8, 16, v{r}", f"v_and_b32 v9, 0xffff0000, v{r}", f"v_lshlrev_b32 v10, 16, v{r+1}", f"v_and_b32 v11, 0xffff0000, v{r+1}",
                f"v_lshlrev_b32 v{r}, 16, v{r+2}", f"v_and_b32 v{r+1}, 0xffff0000, v{r+2}", f"v_lshlrev_b32 v{r+2}, 16, v{r+3}", f"v_and_b32 v{r+3}, 0xffff0000, v{r+3}",
                f"v_fmac_f32 v{r}, v8, v250", f"v_fmac_f32 v{r+1}, v9, v250", f"v_fmac_f32 v{r+2}, v10, v250", f"v_fmac_f32 v{r+3}, v11, v250"]
    val += W1F + [f"s_add_u32 s{84+t}, s26, s{16+t}" for t in range(9)]
    val += sp(f"s_mul_i32 s93, {sw}, 144\ns_add_u32 s93, s93, s6\ns_lshl_b32 s93, s93, 5\ns_add_u32 s93, s93, {F3_OFF}\ns_lshl_b32 s15, s2, 5\ns_add_u32 s15, s15, {F2_OFF}\nv_add_u32 v7, {W2L}, v4")
    for r in range(4): val += sp(f"s_add_u32 s29, s67, {r+1}\ns_and_b32 s29, s29, 3\ns_lshl_b32 s29, s29, 6\nv_add_u32 v{12+r}, s29, v229")
    seen = set(); nxt = pre
    fin = []; lastn = {}
    for n, (rho, q, dl) in enumerate(seq): lastn[q + dl] = n
    def fin_tau(tau):
        c = ACC + tau * 4; r = INI + tau * 4
        return [f"v_add_f32 v{c+i}, v{c+i}, v{r+i}" for i in range(4)] + [f"v_cvt_pk_bf16_f32 v{c}, v{c}, v{c+2}", f"v_cvt_pk_bf16_f32 v{c+1}, v{c+1}, v{c+3}", ("T", tau)]
    def emit_fin(x):
        if isinstance(x, tuple): E.lds(f"ds_write2st64_b32 v252, v{ACC + x[1]*4}, v{ACC + x[1]*4 + 1} offset0:{x[1]} offset1:{x[1] + 8}", "T")
        else: E(x)
    E.wait(lg=[("A", 0, 0), ("B", 0, 0)])
    nfin = 0
    w2l = [f"buffer_load_dwordx4 a[{4*j}:{4*j+3}], v4, s[60:63], s35 offen {NT}\ns_add_u32 s35, s35, 4096" for j in range(9)]
    for n, (rho, q, dl) in enumerate(seq):
        if n % 36 == 0:
            assert rho == 0 or not nxt
            nxt = nxt + (loads(rho + 1) if rho < 7 else [])
            if rho == 3: E.wait(lg=("I", 7))
            if rho == 7:
                assert not val
                E(W1L)
        tau = q + dl
        a = FR[rho & 1] + q * 4; b = FR[rho & 1] + 32 + dl * 4; c = ACC + tau * 4
        E(f"v_mfma_f32_16x16x32_bf16 {vr(c)}, {vr(a)}, {vr(b)}, {vr(c) if tau in seen else '0'}")
        seen.add(tau)
        if n + 1 < len(seq):
            r2, q2, d2 = seq[n + 1]
            if rho == 7 and n % 36 == 8: E.wait_all(vm=False)
            E.wait(lg=[("A", r2, q2), ("B", r2, d2)])
        if len(E.lg) - E.lg_done >= 13:
            E("s_waitcnt lgkmcnt(9)"); E.lg_done = len(E.lg) - 9
        k = 2
        if w2l and n >= O("w2n", 2) and n % 6 == 2:
            E(w2l.pop(0)); k = 0
            if rho == 0: nxt.pop(0)()
        elif nxt and (rho == 0 or n % 3 != 2):
            nxt.pop(0)(); k = 1
        elif rho in (1, 2) and ini:
            ini.pop(0)(); k = 1
        if rho == 7 and n % 36 >= 9:
            while nfin < 8 and lastn[nfin] + 8 <= n: fin += fin_tau(nfin); nfin += 1
        for _ in range(k):
            if rho >= 3 and val: E(val.pop(0))
            elif fin: emit_fin(fin.pop(0))
    assert not val and not nxt and not ini
    stamp()
    while fin: emit_fin(fin.pop(0))
    E("s_nop 7")
    while nfin < 8:
        for x in fin_tau(nfin): emit_fin(x)
        nfin += 1
    E.wait_all(vm=False); E("s_barrier")
    for j in range(4):
        for h in range(2): E.lds(f"ds_read_b64_tr_b16 {vr(68+4*j+2*h,2)}, v253 offset:{j*512 + h*2048}", ("o", j))
    for j in range(4):
        E.wait(lg=("o", j))
        E(f"buffer_store_dwordx4 {vr(68+4*j)}, v4, {sWS}, s51 offen sc1")
        if j < 3: E("s_add_u32 s51, s51, 4096")
    stamp_out()
    E(f"s_waitcnt vmcnt({4 + (ns[0] if O('fst', 0) else 0)})")
    for j in range(9): E.lds(f"ds_write_b128 v7, a[{4*j}:{4*j+3}] offset:{j*4096}", "w2w")
    E(f"v_mov_b32 v212, {sTag}")
    E.wait_all(); pub("LF_pub3", "s15")
    for t in range(9):
        a, o = (12 + t // 2, 8 * (t & 1)) if t < 8 else (228, 256)
        E.lds(f"ds_read_b64_tr_b16 a[{176+4*t}:{177+4*t}], v{a} offset:{o}", "w2r")
        E.lds(f"ds_read_b64_tr_b16 a[{178+4*t}:{179+4*t}], v{a} offset:{o+16*1152}", "w2r")
    E("s_branch L3_start")

    def reset():
        ns[0] = 0; E.lg = []; E.lg_done = 0; E.vm = []; E.vm_done = 0
    reset()
    E("LF_help:")
    common()
    LA, SA = 16, 77824
    ln_loads(LA, "s35")
    ldtag()
    ln_addr(SA)
    E("s_mov_b32 s60, s36\ns_mov_b32 s61, s37")
    E("v_lshlrev_b32 v3, 7, v0\nv_min_u32 v3, L3_codeend-LF_codeend-4, v3\nv_add_u32 v254, LF_codeend-T_w, v3")
    E(f"v_lshrrev_b32 v8, 3, v0\nv_mul_u32_u24 v8, 9216, v8\nv_and_b32 v9, 7, v0\nv_lshl_add_u32 v8, v9, 4, v8\nv_and_b32 v5, 3, v2\nv_lshlrev_b32 v4, 4, v2\nv_and_b32 v14, 15, v2")
    E("s_sub_u32 s6, s2, 144\ns_lshl_b32 s6, s6, 1")
    for i in range(2):
        u, st, T, D, SRC, AF = f"s{64+i}", f"s{66+i}", 16 + 8 * i, f"s{48+i}", f"s{50+i}", f"s{52+i}"
        E(f"s_add_u32 s7, s6, {i}\ns_mul_i32 {u}, s7, 21846\ns_lshr_b32 {u}, {u}, 16\ns_mul_i32 {st}, {u}, 3\ns_sub_u32 {st}, s7, {st}")
        E(f"s_min_u32 {u}, {u}, 71\ns_mul_i32 {SRC}, {st}, {192*9216}\ns_lshl_b32 s7, {u}, 7\ns_add_u32 {SRC}, {SRC}, s7")
        E(f"s_lshl_b32 s7, {u}, 2\ns_add_u32 s7, s7, {sw}\ns_mul_i32 s14, s7, 3641\ns_lshr_b32 s14, s14, 16\ns_mul_i32 s54, s14, 18\ns_sub_u32 s54, s7, s54")
        E(f"s_mul_i32 {D}, s14, {WP_STRIDE}\ns_add_u32 {D}, {D}, {WP_OFF}\ns_mul_i32 s54, s54, 3\ns_add_u32 s54, s54, {st}\ns_lshl_b32 s54, s54, 5\ns_add_u32 s54, s54, {36*64}")
        E(f"s_lshl_b32 s7, s7, 5\nv_lshl_add_u32 v{12+i}, v14, 1, s7\nglobal_load_ushort v{12+i}, v{12+i}, s[38:39]")
        E(f"s_load_dwordx8 s[{T}:{T+7}], s[32:33], s54")
    E(f"v_lshrrev_b32 v10, 4, v2\nv_lshlrev_b32 v10, 3, v10\nv_bfe_u32 v11, v2, 2, 2\nv_add_u32 v10, v10, v11\nv_lshlrev_b32 v10, 7, v10\nv_lshl_add_u32 v10, v5, 3, v10\ns_lshl_b32 s55, {sw}, 5\nv_add_u32 v10, s55, v10")
    for i in range(4): E(f"v_mov_b32 v{140+i}, 0x3f803f80")
    for t in range(10): E(f"s_mov_b32 s{84+t}, 0x40000000")
    WM = O("wmode", 0)
    def w1dma():
        for i in range(2):
            for j in range(6): E.vmem(f"s_add_u32 m0, s34, {(i*6+j)*4096}\ns_nop 0\nbuffer_load_dwordx4 v8, s[60:63], s{50+i} offen {NT} lds\ns_add_u32 s{50+i}, s{50+i}, {32*9216}", ("A", i))
    if WM == 2: w1dma()
    E(f"s_waitcnt vmcnt({14 if WM == 2 else 2})")
    stamp()
    if WM == 1: w1dma()
    emit(ln_valu(LA, 0))
    E.wait_all(vm=False); E("s_barrier")
    ln_rd(160, 0); mktag(); ln_st(160, "s13")
    stamp()
    E.wait_all(lg=False)
    pub("LF_pub2", "s15")
    stamp()
    E("s_cmp_lg_u32 s5, 31\ns_cbranch_scc1 LF_nopf2\nglobal_load_dword v254, v254, s[32:33]\nLF_nopf2:")
    E("s_cmp_ge_u32 s2, 252\ns_cbranch_scc1 LF_join")
    if WM == 3 or O("hold", 0):
        E(f"v_lshlrev_b32 v214, 5, v0\ns_mov_b32 s55, {U2_OFF}\ns_mov_b32 s54, 0\nLF_poll3:\ns_sleep {O('hsleep', 4)}\nbuffer_load_dword v213, v214, {sWS}, s55 offen sc1\ns_waitcnt vmcnt(0)")
        E(f"v_cmp_ne_u32 vcc, {sTag}, v213\ns_cbranch_vccz LF_poll3ok\ns_add_u32 s54, s54, 1\ns_cmp_lt_u32 s54, 0x40000\ns_cbranch_scc1 LF_poll3\nLF_poll3ok:\ns_barrier")
    if WM in (0, 3): w1dma()
    V1 = 16
    for i in range(2):
        E.wait(vm=("A", i)); E("s_barrier")
        if i == 1: stamp()
        C = 144 + 4 * i
        for ks in range(i * 6, i * 6 + 6):
            for h in range(2): E.lds(f"ds_read_b64_tr_b16 {vr(V1+4*ks+2*h,2)}, v10 offset:{ks*4096 + h*512}", ("w1", ks))
        for ks in range(i * 6, i * 6 + 6):
            E.wait(lg=("w1", ks))
            E.vmem(f"s_add_u32 s55, s{48+i}, s{16 + 8*i + ks - 6*i}\nbuffer_store_dwordx4 {vr(V1+4*ks)}, v4, {sWS}, s55 offen sc1", "st")
            E(f"v_mfma_f32_16x16x32_bf16 {vr(C)}, v[140:143], {vr(V1+4*ks)}, {'0' if ks == i * 6 else vr(C)}")
        E(f"s_add_u32 s55, s{48+i}, s{22 + 8*i}\ns_lshl_b32 s54, s{66+i}, 2\ns_add_u32 s54, s54, s55\ns_nop 5")
        E(f"v_cvt_pk_bf16_f32 v9, v{C}, v{C}\nv_and_b32 v9, 0xffff0000, v9\nv_sub_f32 v9, v{C}, v9\nv_cvt_pk_bf16_f32 v{C+1}, v{C}, v9")
        E.vmem(f"buffer_store_dword v{C+1}, v4, {sWS}, s54 offen offset:4 sc1", "st")
        E(f"s_cmp_lg_u32 s{66+i}, 0\ns_cbranch_scc1 LF_nob{i}\nbuffer_store_dword v{12+i}, v4, {sWS}, s55 offen sc1\nLF_nob{i}:")
    stamp_out()
    E(f"LF_join:\ns_lshl_b32 s15, s2, 5\ns_add_u32 s15, s15, {F2_OFF}\ns_waitcnt vmcnt(0)")
    pub("LF_pub4", "s15")
    E("\n".join(W1F) + "\n" + W1L + "\ns_waitcnt vmcnt(0)\ns_branch L3_start")
    w1, w2 = frag_tables()
    E(".p2align 6\n.type T_w,@object\nT_w:")
    for j in range(4):
        for p in range(9):
            E(".long " + ", ".join(str(int(x) * 1024) for x in list(w2[j, p]) + [0] * 7))
    for t in range(18):
        for st in range(3):
            E(".long " + ", ".join(str(int(x) * 1024) for x in list(w1[6*st:6*st+6, t]) + [w1[18, t], 0]))
    E(".size T_w, .-T_w\n.p2align 6\nLF_codeend:")
    return E.text()
```

```python
from layout import *
from emit import *

NSLOT = 9
K3_STAT = NSLOT * SF * 1024
K3_LDS = K3_STAT + 1024

def gen_k3(stamps=False, LA=5, NRING=8, opt=None):
    opt = opt or {}
    O = lambda k, d: opt.get(k, d)
    E = Em()
    _vm = E.vmem
    def vmem_dbg(txt, tag=None):
        k = tag[0] if isinstance(tag, tuple) else tag
        if k in O("drop", []) and not (k == "dma" and tag[1] < 2):
            E.vm_drop = getattr(E, "vm_drop", set()); E.vm_drop.add(tag); return
        if k in O("plain", []): txt = txt.replace(" sc1", "")
        _vm(txt, tag)
    E.vmem = vmem_dbg
    _wait = E.wait
    def wait_dbg(vm=None, lg=None):
        if vm in getattr(E, "vm_drop", set()): vm = None
        _wait(vm=vm, lg=lg)
    E.wait = wait_dbg
    name = "mlp_kernel"
    sWS, sOUT, sB2 = "s[8:11]", "s[12:15]", "s[16:19]"
    sw, sMt, sFq, sg, sFt = "s20", "s21", "s22", "s23", "s24"
    sW, sLds, sX, sHX = "s25", "s26", "s27", ["s28", "s29", "s30", "s31"]
    sFlOwn, sFlH, sFlP, sRow = "s32", "s33", "s34", "s35"
    sDiag, sM = "s[40:41]", [None, "s[42:43]", "s[44:45]", "s[46:47]"]
    sT, sT2, sSpin, sA = "s50", "s51", "s52", "s36"
    sPo = ["s53", "s54", "s55"]; sPi, sP8o, sP8b, sLo, sHi, sOo = "s56", "s57", "s58", "s48", "s49", "s59"
    vL16, vDMA, vX, vFst, vFH, vStat, vFlag, vT0, vT1, vT2 = [f"v{i}" for i in range(1, 11)]
    vD = ["v11", "v12", "v13"]
    vFval, vFP = "v14", "v15"
    vX2, vSw = "v255", ["v253", "v254"]
    AFF = 16
    ACC1 = 24
    ACC2 = ACC1 + 144
    HBv = ACC2 + 72
    ST = ACC2
    ONES = ACC2 + 16
    def acc1(t, mt): return ACC1 + (t * 2 + mt) * 4
    def acc2(t, mt): return ACC2 + (t * 2 + mt) * 4
    FREEQ = [acc1(2 * p + 1, mt) for p in range(9) for mt in range(2)]
    XA, WR, PE = 0, 144, 176
    def xreg(ks, mt): return XA + (ks * 2 + mt) * 4
    nstamp = [0]
    TM = "s_memrealtime" if O("stamps", 1) == 2 else "s_memtime"
    def stamp():
        if stamps:
            i = nstamp[0]; nstamp[0] += 1
            E(f"{TM} s[{62+2*i}:{63+2*i}]"); E.wait_all(vm=False)

    E("L3_start:")
    E(f"s_mov_b32 {sw}, s3\ns_and_b32 {sT}, s2, 7\ns_lshr_b32 {sT2}, s2, 3")
    E(f"s_lshr_b32 {sFq}, {sT}, 1\ns_and_b32 {sg}, {sT2}, 3\ns_lshl_b32 {sFt}, {sFq}, 2\ns_add_u32 {sFt}, {sFt}, {sg}")
    E(f"s_mul_i32 {sW}, {sFt}, {WP_STRIDE}\ns_add_u32 {sW}, {sW}, {WP_OFF}\ns_lshl_b32 {sLds}, {sw}, 12")
    E(f"v_lshlrev_b32 v214, 5, v0\nv_and_b32 v0, 63, v0\nv_lshlrev_b32 {vL16}, 4, v0\nv_add_u32 {vDMA}, {sLds}, {vL16}")
    def urgent2():
        E(f"s_and_b32 {sT}, {sT}, 1\ns_lshl_b32 {sT}, {sT}, 3\ns_lshr_b32 {sT2}, {sT2}, 2\ns_add_u32 {sMt}, {sT}, {sT2}")
        E(f"v_and_b32 {vT0}, 15, v0\nv_lshrrev_b32 {vT1}, 4, v0")
        E(f"v_lshlrev_b32 {vX}, 15, {vT1}\nv_lshl_add_u32 {vX}, {vT0}, 4, {vX}\nv_add_u32 {vX2}, 16384, {vX}")
        E(f"s_lshl_b32 {sRow}, {sMt}, 2\ns_add_u32 {sRow}, {sRow}, {sw}\ns_lshl_b32 {sRow}, {sRow}, 5")
        E(f"s_lshl_b32 {sX}, {sRow}, 3")
        if HB_OFF: E(f"s_add_u32 {sX}, {sX}, {HB_OFF}")
        for i in range(3): E(f"v_add_u32 {vD[i]}, {i * 65536}, {vL16}")
        for i in range(4): E(f"v_mov_b32 v{ONES+i}, 0x3f803f80")
        E(f"v_cmp_eq_u32 vcc, 0, v0\nv_mov_b32 {vFst}, 0x40000000\ns_nop 0\nv_cndmask_b32 {vFst}, {vFst}, 0, vcc\ns_waitcnt lgkmcnt(0)")

    steps = steps_list(); pairs = pairs_of(); npass = len(PASSES)
    M = []
    fi = 0
    seen1 = set(); seen2 = set()
    pos = {}; endpos = {}
    peer_reg = {}
    for s in steps:
        if s[0] == 'g2' and s[1] > 0 and (s[1], s[2]) not in peer_reg:
            pk = len(peer_reg)
            peer_reg[(s[1], s[2])] = (PE + pk * 8) if pk < 10 else (XA + (pk - 10) * 8)
    last2 = {}
    for s in steps:
        pos.setdefault(s[:3], len(M))
        if s[0] == 'g1':
            _, q, ks, tiles = s
            for t in tiles:
                for mt in range(2):
                    c = acc1(t, mt)
                    B = ar(xreg(ks, mt)) if ks < 18 else vr(AFF + mt * 4)
                    C = vr(c) if (t, mt) in seen1 else "0"
                    seen1.add((t, mt))
                    M.append(dict(txt=f"v_mfma_f32_16x16x32_bf16 {vr(c)}, %A, {B}, {C}", frag=fi,
                                  vm=None, valu=("aff", mt) if ks == 18 else ("xf", ks) if q == 0 else None))
                fi += 1
                if q == 0 and ks < 18 and t in (1, 3):
                    mt = t // 2
                    X = ar(xreg(ks, mt))
                    for j, A in enumerate([X, vr(ONES)]):
                        c = ST + (mt * 2 + j) * 4
                        M.append(dict(txt=f"v_mfma_f32_16x16x32_bf16 {vr(c)}, {A}, {X}, {vr(c) if ks else '0'}", frag=None, vm=None, valu=None))
        else:
            _, j, p, tiles = s
            for t in tiles:
                for mt in range(2):
                    c = acc2(t, mt)
                    B = vr(acc1(2 * p, mt)) if j == 0 else ar(peer_reg[(j, p)] + mt * 4)
                    C = vr(c) if (t, mt) in seen2 else "0"
                    seen2.add((t, mt))
                    M.append(dict(txt=f"v_mfma_f32_16x16x32_bf16 {vr(c)}, %A, {B}, {C}", frag=fi,
                                  vm=("peer", j, p) if j else None, valu=("h", p, mt) if j == 0 else None))
                    last2[t] = len(M)
                fi += 1
        endpos[s[:3]] = len(M)
    assert fi == NFRAG
    N = len(M)
    first_use = {}
    for n, m in enumerate(M):
        if m["frag"] is not None: first_use.setdefault(m["frag"], n)
    g2 = pos[('g2', 0, 0)]

    LQ = []
    for k in range(NSTAGE):
        dl = first_use[k * SF] - 2 * LA
        slot = k % NSLOT
        for i in range(SF // 4):
            def f(i=i, k=k):
                E.vmem(f"buffer_load_dwordx4 {vDMA}, {sWS}, {sW} offen offset:{i*1024} sc1 lds", ("dma", k))
            LQ.append([dl - O('dmalead', 40), i, f, k, 0,
                       f"s_add_u32 m0, {sLds}, {slot * SF * 1024}" if i == 0 else None,
                       f"s_add_u32 {sW}, {sW}, {SF * 1024}" if i == SF // 4 - 1 else None])
    for ks in range(18):
        for mt in range(2):
            def f(ks=ks, mt=mt):
                E.vmem(f"buffer_load_dwordx4 {ar(xreg(ks, mt))}, {vX2 if mt else vX}, {sWS}, {sX} offen sc1", ("x", ks))
            LQ.append([pos[('g1', 0, max(ks - 1, 0))] - O('dmalead', 40), 10 + 2 * ks + mt, f, None, 0, None, f"s_add_u32 {sX}, {sX}, {4 * 32768}" if mt else None])
    LQ.sort(key=lambda x: (x[0], x[1]))
    def run_now(x):
        if x[5]: E(x[5] + "\ns_nop 0")
        x[2]()
        if x[6]: E(x[6])


    late = []
    def LT(t): late.extend(t.split("\n"))
    for i in range(4): LT(f"s_add_u32 s{4+i}, s12, {i+1}")
    LT(f"s_mov_b32 s12, s44\ns_mov_b32 s13, s45\ns_mov_b32 s14, {2048*576*2}\ns_mov_b32 s15, 0x20000")
    LT(f"s_mov_b32 s16, s42\ns_mov_b32 s17, s43\ns_mov_b32 s18, {576*2}\ns_mov_b32 s19, 0x20000")
    LT(f"s_lshl_b32 {sT}, {sMt}, 4\ns_lshl_b32 {sT2}, {sFq}, 2\ns_add_u32 {sT}, {sT}, {sT2}")
    for j in range(4):
        LT(f"s_add_u32 {sT2}, {sg}, {j}\ns_and_b32 {sT2}, {sT2}, 3\ns_add_u32 {sT2}, {sT2}, {sT}\ns_lshl_b32 {sT2}, {sT2}, 2\ns_add_u32 {sT2}, {sT2}, {sw}")
        if j == 0: LT(f"s_lshl_b32 {sFlOwn}, {sT2}, 7\ns_add_u32 {sFlOwn}, {sFlOwn}, {FL_OFF}")
        LT(f"s_mul_i32 {sHX[j]}, {sT2}, 18432\ns_add_u32 {sHX[j]}, {sHX[j]}, {HX_OFF}")
    LT(f"s_lshl_b32 {sFlH}, {sT}, 2\ns_add_u32 {sFlH}, {sFlH}, {sw}\ns_lshl_b32 {sFlH}, {sFlH}, 7\ns_add_u32 {sFlH}, {sFlH}, {FL_OFF}")
    LT(f"s_lshl_b32 {sT}, {sMt}, 4\ns_add_u32 {sT}, {sT}, {sg}\ns_lshl_b32 {sT}, {sT}, 2\ns_add_u32 {sT}, {sT}, {sw}\ns_lshl_b32 {sFlP}, {sT}, 7\ns_add_u32 {sFlP}, {sFlP}, {FL_OFF}")
    LT(f"s_lshl_b32 {sT}, {sMt}, 2\ns_add_u32 {sT}, {sT}, {sg}\ns_lshl_b32 {sT}, {sT}, 2")
    LT(f"s_lshl_b32 {sLo}, {sw}, 11\ns_add_u32 {sLo}, {sLo}, {PP_OFF}")
    for r in range(3):
        LT(f"s_add_u32 {sT2}, {sFq}, {r+1}\ns_and_b32 {sT2}, {sT2}, 3\ns_add_u32 {sT2}, {sT2}, {sT}\ns_mul_i32 {sT2}, {sT2}, {3*8192}\ns_add_u32 {sT2}, {sT2}, {r*8192}\ns_add_u32 {sPo[r]}, {sT2}, {sLo}")
    LT(f"s_add_u32 {sT2}, {sFq}, {sT}\ns_mul_i32 {sT2}, {sT2}, {3*8192}\ns_add_u32 {sPi}, {sT2}, {sLo}")
    LT(f"s_add_u32 {sT2}, {sT}, {sw}\ns_lshl_b32 {sP8b}, {sT2}, 12\ns_add_u32 {sP8b}, {sP8b}, {P8_OFF}\ns_lshl_b32 {sT2}, {sFq}, 10\ns_add_u32 {sP8o}, {sP8b}, {sT2}")
    LT(f"s_mul_i32 s94, {sg}, 144\ns_mul_i32 {sT}, {sFq}, 36\ns_add_u32 s94, s94, {sT}\ns_lshl_b32 s94, s94, 5\ns_add_u32 s94, s94, {F3_OFF}")
    LT(f"s_mov_b32 {sLo}, 0x3f80\ns_mov_b32 {sHi}, 0x3f800000")
    LT(f"v_lshrrev_b32 {vT2}, 2, {vT0}\nv_cmp_eq_u32 {sDiag}, {vT2}, {vT1}")
    LT(f"v_and_b32 {vT2}, 3, v0")
    for i in range(1, 4): LT(f"v_cmp_eq_u32 {sM[i]}, {i}, {vT2}")
    LT(f"v_lshlrev_b32 {vFH}, 9, {vT2}\nv_lshlrev_b32 {vFP}, 11, {vT2}")
    LT(f"s_lshl_b32 {sT}, {sw}, 7\ns_add_u32 {sT}, {sT}, {K3_STAT}\nv_lshl_add_u32 {vT0}, {vT0}, 2, {sT}")
    LT(f"v_lshlrev_b32 {vT2}, 2, v0\nv_add_u32 {vT2}, {K3_STAT + 512}, {vT2}\nv_cndmask_b32 {vStat}, {vT2}, {vT0}, {sDiag}")
    LT(f"v_lshlrev_b32 {vT1}, 4, {vT1}")

    def jst(i):
        if O("jst", 0): E(f"s_memrealtime s[{68+2*i}:{69+2*i}]\ns_waitcnt lgkmcnt(0)")
    jst(0)
    E(f"s_mov_b32 {sSpin}, 0\nL3_pw:\nv_cmp_ne_u32 vcc, v212, v230\ns_cbranch_vccz L3_pwok\ns_sleep 2\nbuffer_load_dword v230, v231, {sWS}, s64 offen sc1\ns_waitcnt vmcnt(0)")
    E(f"s_add_u32 {sSpin}, {sSpin}, 1\ns_cmp_lt_u32 {sSpin}, 0x40000\ns_cbranch_scc1 L3_pw\nL3_pwok:")
    jst(1)
    for x in [x for x in LQ if x[3] is not None and x[3] < O("nw0", 3)]:
        LQ.remove(x); run_now(x)
    jst(2)
    if O("gate", 1):
        E(f"s_cmp_lt_u32 s2, 144\ns_cbranch_scc1 L3_gok\ns_mov_b32 {sSpin}, 0\nL3_g:\ns_sleep {O('gsleep', 2)}\nbuffer_load_dword v213, v251, {sWS}, s65 offen offset:{O('gate', 1) * 32} sc1\ns_waitcnt vmcnt(0)")
        E(f"v_cmp_ne_u32 vcc, v212, v213\ns_cbranch_vccz L3_gok\ns_add_u32 {sSpin}, {sSpin}, 1\ns_cmp_lt_u32 {sSpin}, 0x40000\ns_cbranch_scc1 L3_g\nL3_gok:")
    E(f"s_mov_b32 {sSpin}, 0\nbuffer_load_dword v213, v214, {sWS}, s65 offen sc1")
    urgent2()
    E(f"L3_p2:\ns_waitcnt vmcnt(0)\nv_cmp_ne_u32 vcc, v212, v213\ns_cbranch_vccz L3_p2ok\ns_sleep {O('psleep', 1)}\nbuffer_load_dword v213, v214, {sWS}, s65 offen sc1\ns_add_u32 {sSpin}, {sSpin}, 1\ns_cmp_lt_u32 {sSpin}, 0x40000\ns_cbranch_scc1 L3_p2\ns_waitcnt vmcnt(0)\nL3_p2ok:")
    E.vm_done = len(E.vm)
    jst(3)
    E("s_barrier")
    if O("rt", 0): E("s_memrealtime s[96:97]")
    if stamps: E(f"{TM} s[60:61]")
    for _ in range(O("ninit", 10)): run_now(LQ.pop(0))
    if O("rt", 0) or stamps: E("s_waitcnt lgkmcnt(0)")
    if O("jst", 0):
        E(f"s_lshl_b32 s64, s2, 2\ns_add_u32 s64, s64, {sw}\ns_lshl_b32 s64, s64, 6\ns_add_u32 s64, s64, {TS_OFF + 0x80000}")
        for i in range(4): E.vmem(f"v_mov_b32 v213, s{68+2*i}\nbuffer_store_dword v213, v251, {sWS}, s64 offen offset:{40+i*4}", "j")
        E.vmem(f"v_mov_b32 v213, {sSpin}\nbuffer_store_dword v213, v251, {sWS}, s64 offen offset:56", "j")
    cur = [0]
    Q = []
    def task(earliest, fn, tag=None): Q.append([earliest, fn, tag])
    def vtask(earliest, txt, tag=None): task(earliest, lambda: E(txt), tag)
    done_at = {}
    EV = {}
    def at(n, fn): EV.setdefault(n, []).append(fn)
    for ks in range(18):
        p = xreg(ks, 0); e = pos[('g1', 0, ks - 1)] + O("xfoff", 8) if ks else 0
        def w(ks=ks, p=p):
            while E.vm.count(("x", ks)) < 2:
                flush_pend()
                if E.vm.count(("x", ks)) >= 2: break
                x = pick(cur[0]); LQ.remove(x); run_now(x); forced.append(("x", ks))
            E.wait(vm=("x", ks)); E(f"v_accvgpr_read_b32 {vSw[0]}, a{p+2}")
        task(e, w)
        vtask(e, f"v_accvgpr_read_b32 {vSw[1]}, a{p+3}")
        vtask(e, f"v_accvgpr_mov_b32 a{p+2}, a{p+4}"); vtask(e, f"v_accvgpr_mov_b32 a{p+3}, a{p+5}")
        vtask(e, f"v_accvgpr_write_b32 a{p+4}, {vSw[0]}"); vtask(e, f"v_accvgpr_write_b32 a{p+5}, {vSw[1]}", ("xf", ks))
    e0 = endpos[('g1', 0, 17)] + 4
    inv = "0x3ae38e39"
    for mt in range(2):
        G, S = ST + mt * 8, ST + mt * 8 + 4
        a, b = f"v{G}", f"v{S}"
        r0, r1 = f"v{AFF+mt*4}", f"v{AFF+mt*4+1}"
        seq = [f"v_cndmask_b32 {a}, {a}, v{G+i}, {sM[i]}" for i in range(1, 4)]
        seq += [f"v_mul_f32 {b}, {inv}, {b}", f"v_mul_f32 {a}, {inv}, {a}", f"v_fma_f32 {a}, -{b}, {b}, {a}",
                f"v_max_f32 {a}, 0, {a}",
                f"v_cvt_pk_bf16_f32 {a}, {a}, {a}", f"v_lshlrev_b32 {a}, 16, {a}",
                f"v_add_f32 {a}, 0x3727c5ac, {a}",
                f"v_cvt_pk_bf16_f32 {a}, {a}, {a}", f"v_lshlrev_b32 {a}, 16, {a}",
                f"v_sqrt_f32 {a}, {a}\ns_nop 0",
                f"v_cvt_pk_bf16_f32 {r0}, {a}, -{b}", f"v_cvt_pk_bf16_f32 {r1}, -{b}, -{b}",
                f"v_lshlrev_b32 {a}, 16, {r0}", f"v_mul_f32 {a}, {a}, {a}", f"v_rcp_f32 {a}, {a}",
                f"v_cndmask_b32 {r0}, 0, {r0}, {sDiag}"]
        for x in seq: vtask(e0, x)
        vtask(e0, f"v_cndmask_b32 {r1}, 0, {r1}, {sDiag}")
        vtask(e0, f"v_mov_b32 v{AFF+mt*4+2}, {r1}")
        vtask(e0, f"v_mov_b32 v{AFF+mt*4+3}, {r1}", ("aff", mt))
        task(e0, lambda a=a, mt=mt: E.lds(f"ds_write_b32 {vStat}, {a} offset:{mt*64}", "statw"))
    def flag_store(val):
        if O("drain", 0): E.wait_all(lg=False)
        E(f"v_mov_b32 {vFval}, s{3+val}")
        E.vmem(f"buffer_store_dword {vFval}, {vFst}, {sWS}, {sFlOwn} offen sc1", ("flag", val))
    slow = []
    def poll_check(tag, need, soff, voff):
        lab = f"L3_poll{len(slow)}"
        if O("nopoll", 0): return
        E.wait(vm=tag)
        E(f"v_subrev_u32 {vFlag}, s{3+need}, {vFlag}\nv_cmp_lt_u32 vcc, {4-need}, {vFlag}\ns_cbranch_vccnz {lab}\n{lab}_ret:")
        slow.append((lab, need, soff, voff))
    w2t = O("w2t0", 60)
    for t in range(9):
        LQ.append([-20000 + t, 0, lambda t=t: E.vmem(f"buffer_store_dwordx4 a[{176+4*t}:{179+4*t}], {vL16}, {sWS}, s{84+t} offen sc1", "w2s"), None, w2t + t * O("w2gap", 20), None, None])
    w2f = w2t + 9 * O("w2gap", 20) + 80
    at(w2f, lambda: (E.wait(vm="w2s"), E(f"v_mov_b32 {vFval}, s7"), E.vmem(f"buffer_store_dword {vFval}, {vFst}, {sWS}, s93 offen sc1", "w2f")))
    at(w2f + 1, lambda: E(f"s_or_b32 {sT}, s2, {sw}\ns_cmp_lg_u32 {sT}, 0\ns_cbranch_scc1 L3_nobump\ns_mov_b32 {sT}, {EP_OFF}\nbuffer_store_dword v212, {vFst}, {sWS}, {sT} offen sc1\nL3_nobump:"))
    kw2 = M[g2]["frag"] // SF
    w2chk = first_use[(kw2 - (NSLOT - 2)) * SF] - 2 * LA - 4
    assert w2chk - 80 > w2f + 60, (w2chk, w2f)
    at(w2chk - 80, lambda: E.vmem(f"buffer_load_dword {vFlag}, {vSw[0]}, {sWS}, s94 offen sc1", "fl3"))
    at(w2chk, lambda: poll_check("fl3", 4, "s94", vSw[0]))
    vtask(endpos[('g1', 0, 17)], f"v_min_u32 {vSw[0]}, 35, v0"); vtask(endpos[('g1', 0, 17)], f"v_lshlrev_b32 {vSw[0]}, 5, {vSw[0]}")
    for x in LQ:
        if x[3] is not None and x[3] >= kw2: x[4] = w2chk + 1
    SGAP, SLAT, VIS, LLAT = O("sgap", 20), O("slat", 90), O("vis", 80), O("llat", 80)
    flagpos = []
    tst = 0
    for q in range(npass):
        e = endpos[('g1', q, 18)] + 4
        u = 0
        for p in pairs[q]:
            for mt in range(2):
                T0, T1 = acc1(2 * p, mt), acc1(2 * p + 1, mt)
                for r in list(range(T0, T0 + 4)) + list(range(T1, T1 + 4)):
                    vtask(e, f"v_mul_f32 v{r}, v{r}, |v{r}|")
                src = [(T0, T0 + 1), (T0 + 2, T0 + 3), (T1, T1 + 1), (T1 + 2, T1 + 3)]
                for i, (x, y) in enumerate(src): vtask(e, f"v_cvt_pk_bf16_f32 v{T0+i}, v{x}, v{y}")
                for i in range(4): vtask(e, f"v_pk_max_i16 v{T0+i}, v{T0+i}, 0", ("h", p, mt) if i == 3 else None)
                def st(p=p, mt=mt, T0=T0, q=q):
                    assert ("h", p, mt) in done_at, (p, mt)
                    E.vmem(f"buffer_store_dwordx4 {vr(T0)}, {vL16}, {sWS}, {sA} offen sc1", ("hst", q))
                u += 1
                tst = max(tst + SGAP, e + 16 * u + 4)
                LQ.append([-10000 + tst, 0, st, None, tst, f"s_add_u32 {sA}, {sHX[0]}, {(p*2+mt)*1024}", None])
        fp = tst + SLAT
        flagpos.append(fp)
        at(fp, lambda q=q: (E.wait(vm=("hst", q)), flag_store(q + 1)))
    xfree = endpos[('g1', npass - 1, 17)]
    info = []
    for q in range(npass):
        fl = flagpos[q] + VIS
        chk = fl + LLAT
        at(fl, lambda q=q: E.vmem(f"buffer_load_dword {vFlag}, {vFH}, {sWS}, {sFlH} offen sc1", ("fl", q)))
        at(chk, lambda q=q: poll_check(("fl", q), q + 1, sFlH, vFH))
        for j in range(1, 4):
            for p in pairs[q]:
                for mt in range(2):
                    def ld(j=j, p=p, mt=mt):
                        E.vmem(f"buffer_load_dwordx4 {ar(peer_reg[(j,p)] + mt*4)}, {vL16}, {sWS}, {sA} offen sc1", ("peer", j, p))
                        info.append((j, p, cur[0] - g2, pos[('g2', j, p)] - g2))
                    ea = chk + 1
                    if peer_reg[(j, p)] < PE: ea = max(ea, xfree + 2)
                    assert ea < pos[('g2', j, p)]
                    LQ.append([pos[('g2', j, p)] - O('peerlead', 90), 20 + mt, ld, None, ea, f"s_add_u32 {sA}, {sHX[j]}, {(p*2+mt)*1024}", None])
    LQ.sort(key=lambda x: (x[0], x[1]))
    if O("verbose", 0):
        print("N", N, "g2", g2, "flagpos", [f - g2 for f in flagpos])
    tp = 0
    for r in range(3):
        e = last2[2 * r + 1] + 6
        for mt in range(2):
            T0, T1 = acc2(2 * r, mt), acc2(2 * r + 1, mt)
            for i, (x, y) in enumerate([(T0, T0 + 1), (T0 + 2, T0 + 3), (T1, T1 + 1), (T1 + 2, T1 + 3)]):
                vtask(e, f"v_cvt_pk_bf16_f32 v{T0+i}, v{x}, v{y}")
            task(e + mt * O("pgap", 14), lambda r=r, mt=mt, T0=T0: E.vmem(f"buffer_store_dwordx4 {vr(T0)}, {vL16}, {sWS}, {sPo[r]} offen offset:{mt*1024} sc1", "pst"))
    e = last2[8] + 6
    P8 = FREEQ[0]
    for mt in range(2):
        T = acc2(8, mt)
        vtask(e, f"v_cvt_pk_bf16_f32 v{P8+mt*2}, v{T}, v{T+1}"); vtask(e, f"v_cvt_pk_bf16_f32 v{P8+mt*2+1}, v{T+2}, v{T+3}")
    task(e, lambda: E.vmem(f"buffer_store_dwordx4 {vr(P8)}, {vL16}, {sWS}, {sP8o} offen sc1", "pst"), "pst_done")
    f4 = min(e + 8 + O("slat4", 70), N - 1)
    at(f4, lambda: (E.wait(vm="pst"), flag_store(4)))
    TH = [FREEQ[1], FREEQ[2]]; TB = FREEQ[3]; T8 = FREEQ[4]; T8b = FREEQ[5]; RS = FREEQ[6]
    def tailpf():
        E(f"s_mul_i32 {sT2}, {sg}, 18\ns_lshl_b32 {sT}, {sFq}, 2\ns_add_u32 {sT2}, {sT2}, {sT}")
        E(f"s_lshl_b32 {sOo}, {sT2}, 4")
        E(f"s_lshl_b32 {sT2}, {sT2}, 15\ns_lshl_b32 {sT}, {sRow}, 3\ns_add_u32 {sT}, {sT}, {sT2}")
        if HB_OFF: E(f"s_add_u32 {sT}, {sT}, {HB_OFF}")
        for i in range(2): E.vmem(f"buffer_load_dwordx4 {vr(TH[i])}, {vX2 if i else vX}, {sWS}, {sT} offen sc1", "tpf")
        E.vmem(f"buffer_load_dwordx4 {vr(TB)}, {vT1}, {sB2}, {sOo} offen", "tpf")
        E(f"s_mul_i32 {sT}, {sRow}, 1152\ns_add_u32 {sOo}, {sOo}, {sT}")
        for mt in range(2): E.lds(f"ds_read_b32 v{RS+mt}, {vT0} offset:{mt*64}", "rs")
    def tailpf8():
        a = f"v{RS+2}"; b = f"v{RS+3}"
        E(f"v_lshlrev_b32 {a}, 10, {vT1}\nv_and_b32 {b}, 15, v0\nv_lshl_add_u32 {a}, {b}, 4, {a}")
        E(f"s_mul_i32 {sT2}, {sg}, {18*32768}\ns_lshl_b32 {sT}, {sRow}, 3\ns_add_u32 {sT}, {sT}, {sT2}\ns_add_u32 {sT}, {sT}, {HB_OFF + 16*32768}")
        E.vmem(f"buffer_load_dwordx4 {vr(T8)}, {a}, {sWS}, {sT} offen sc1", "tpf")
        E(f"v_lshrrev_b32 {b}, 1, {vT1}\ns_mul_i32 {sT}, {sg}, 288")
        E.vmem(f"buffer_load_dwordx2 {vr(T8b,2)}, {b}, {sB2}, {sT} offen offset:256", "tpf")
    tpf = g2 + 200
    at(tpf, tailpf); at(tpf + 7, tailpf8)
    Q2 = []
    e = tpf + 120
    first = True
    for mt in range(2):
        for i in range(4):
            h, b = TH[i // 2] + 2 * mt + (i & 1), TB + i
            lo, hi = HBv + mt * 8 + i * 2, HBv + mt * 8 + i * 2 + 1
            for x in [f"v_lshlrev_b32 v{lo}, 16, v{h}", f"v_and_b32 v{hi}, 0xffff0000, v{h}", f"v_lshlrev_b32 {vT2}, 16, v{b}", f"v_add_f32 v{lo}, v{lo}, {vT2}",
                      f"v_and_b32 {vT2}, 0xffff0000, v{b}", f"v_add_f32 v{hi}, v{hi}, {vT2}"]:
                if first: Q2.append([e, lambda x=x: (E.wait(vm="tpf"), E(x)), None]); first = False
                else: Q2.append([e, lambda x=x: E(x), None])
    Q2.append([e, lambda: E(f"v_and_b32 {vT2}, 15, v0"), None])
    Q2.append([e, lambda: E(f"v_mul_u32_u24 {vT2}, 2304, {vT2}"), None])
    Q2.append([e, lambda: E(f"v_add_u32 {vStat}, {vT2}, {vT1}"), None])
    Q = sorted(Q + Q2, key=lambda x: x[0])
    flP = min(f4 + O("vis4", 60), N - 1)
    at(flP, lambda: E.vmem(f"buffer_load_dword {vFlag}, {vFP}, {sWS}, {sFlP} offen sc1", "flP"))

    rd_next = [0]; bar_done = [-1]; forced = []; lead = []
    def pick(n):
        for x in LQ:
            if x[4] <= n and (x[3] is None or x[3] - (NSLOT - 2) <= bar_done[0]): return x
        return None
    pend = [None]; post = []
    def flush_pend():
        while post: E(post.pop(0))
        if pend[0] is not None:
            x = pend[0]; pend[0] = None
            E("s_nop 0"); x[2]()
            if x[6]: E(x[6])
    def issue_read():
        f = rd_next[0]; rd_next[0] += 1
        k = f // SF
        if f % SF == 0:
            if any(x[3] == k for x in LQ) or (pend[0] is not None and pend[0][3] == k):
                flush_pend()
                for x in [x for x in LQ if x[3] == k]:
                    LQ.remove(x); run_now(x); forced.append(("dma", k))
            E.wait(vm=("dma", k))
            if not O("nobar", 0): E("s_barrier")
            bar_done[0] = k
        addr = (k % NSLOT) * SF * 1024 + (f % SF) * 1024
        E.lds(f"ds_read_b128 {ar(WR + (f % NRING) * 4)}, {vD[addr >> 16]} offset:{addr & 65535}", ("fr", f))
    def waits_for(m, n):
        if m["vm"] is not None:
            while E.vm.count(m["vm"]) < 2 and m["vm"] not in getattr(E, "vm_drop", set()):
                flush_pend()
                if E.vm.count(m["vm"]) >= 2: break
                x = pick(n); LQ.remove(x); run_now(x); forced.append(m["vm"])
        E.wait(vm=m["vm"], lg=("fr", m["frag"]) if m["frag"] is not None else None)
    stamp()
    for _ in range(LA): issue_read()
    last_vm = -100
    stamp_at = {pos[('g1', 0, 1)], pos[('g1', 1, 0)], pos[('g1', 2, 0)], g2, pos[('g2', 1, 0)], pos[('g2', 1, pairs[1][0])], last2[1], last2[8]}
    isread = lambda n: n < N and M[n]["frag"] is not None and first_use[M[n]["frag"]] == n and M[n]["frag"] + LA < NFRAG
    for n, m in enumerate(M):
        cur[0] = n
        if n in stamp_at: stamp()
        if m["valu"] is not None:
            while m["valu"] not in done_at:
                it = Q.pop(0); assert it[0] <= n, (it, n); it[1]()
                if it[2]: done_at[it[2]] = E.n
            if E.n - done_at[m["valu"]] < 2: E("s_nop 1")
        waits_for(m, n)
        A = ar(WR + (m["frag"] % NRING) * 4) if m["frag"] is not None else ""
        E(m["txt"].replace("%A", A))
        n0 = E.n
        if n + 1 < N: waits_for(M[n + 1], n)
        gapreq = O("lgap0", 4) if n < pos[('g1', 1, 0)] else O("lgap", 4)
        if E.n == n0 and post: E(post.pop(0))
        if pend[0] is None and not post and not isread(n + 1) and n + 1 - last_vm >= gapreq:
            x = pick(n + 1)
            if x is not None and (x[5] is None or E.n == n0):
                LQ.remove(x); pend[0] = x; pend_at = n + 1
                if x[5]: E(x[5])
        if late and late[0].startswith("s_") and E.n == n0: E(late.pop(0))
        slots = 2 - max(0, E.n - n0 - 1)
        nv = len(E.vm)
        for fn in EV.pop(n, []):
            fn(); slots -= 2
        if len(E.vm) != nv: last_vm = n
        if isread(n):
            issue_read(); slots -= 1
        elif pend[0] is not None and pend_at <= n:
            x = pend[0]; pend[0] = None
            if x[3] is not None: lead.append(first_use[x[3] * SF] - n)
            x[2](); slots = 0; last_vm = n
            if x[6]: post.append(x[6])
        while slots > 0 and Q and Q[0][0] <= n:
            it = Q.pop(0); it[1](); slots -= 1
            if it[2]: done_at[it[2]] = E.n
        if slots > 0 and late: E(late.pop(0))
        assert not late or n < 250
    flush_pend()
    assert not Q and not EV and not LQ, (len(Q), EV.keys(), len(LQ))
    if O("verbose", 0): print(info); print("forced", forced); print("lead", lead)
    stamp()
    poll_check("flP", 4, sFlP, vFP)
    stamp()
    IN = FREEQ[7:13]; IN8 = FREEQ[13:16]
    for r in range(3):
        for mt in range(2):
            E.vmem(f"buffer_load_dwordx4 {vr(IN[r*2+mt])}, {vL16}, {sWS}, {sPi} offen offset:{mt*1024} sc1", ("in", r))
        if r < 2: E(f"s_add_u32 {sPi}, {sPi}, 8192")
    E(f"s_cmp_lg_u32 {sw}, {sFq}\ns_cbranch_scc1 L3_no8a")
    for i in range(3):
        E(f"s_add_u32 {sT}, {sFq}, {i+1}\ns_and_b32 {sT}, {sT}, 3\ns_lshl_b32 {sT}, {sT}, 10\ns_add_u32 {sT}, {sT}, {sP8b}")
        E(f"buffer_load_dwordx4 {vr(IN8[i])}, {vL16}, {sWS}, {sT} offen sc1")
    E("L3_no8a:")
    E.wait_all()
    for mt in range(2):
        T0, T1 = acc2(6, mt), acc2(7, mt)
        dst = [T0, T0 + 1, T0 + 2, T0 + 3, T1, T1 + 1, T1 + 2, T1 + 3]
        for r in range(3):
            for i in range(4):
                x = IN[r * 2 + mt] + i
                E(f"v_dot2_f32_bf16 v{dst[2*i]}, v{x}, {sLo}, v{dst[2*i]}\nv_dot2_f32_bf16 v{dst[2*i+1]}, v{x}, {sHi}, v{dst[2*i+1]}")
        E("s_nop 2")
        for i in range(8): E(f"v_fma_f32 v{dst[i]}, v{dst[i]}, v{RS+mt}, v{HBv+mt*8+i}")
        for i in range(4): E(f"v_cvt_pk_bf16_f32 v{T0+i}, v{dst[2*i]}, v{dst[2*i+1]}")
        E(f"buffer_store_dwordx4 {vr(T0)}, {vStat}, {sOUT}, {sOo} offen offset:{mt*1152} {O('outflav','')}")
    E(f"s_cmp_lg_u32 {sw}, {sFq}\ns_cbranch_scc1 L3_no8b")
    E(f"s_mul_i32 {sT}, {sRow}, 1152\ns_mul_i32 {sT2}, {sg}, 288\ns_add_u32 {sT}, {sT}, {sT2}")
    E(f"v_add_u32 {vT2}, {vT2}, v{RS+3}")
    for mt in range(2):
        T = acc2(8, mt)
        for r in range(3):
            for i in range(2):
                x = IN8[r] + mt * 2 + i
                E(f"v_dot2_f32_bf16 v{T+2*i}, v{x}, {sLo}, v{T+2*i}\nv_dot2_f32_bf16 v{T+2*i+1}, v{x}, {sHi}, v{T+2*i+1}")
        Z = HBv + mt * 4
        for i in range(2):
            h, b = T8 + mt * 2 + i, T8b + i
            E(f"v_lshlrev_b32 v{Z+2*i}, 16, v{h}\nv_and_b32 v{Z+2*i+1}, 0xffff0000, v{h}")
            E(f"v_dot2_f32_bf16 v{Z+2*i}, v{b}, {sLo}, v{Z+2*i}\nv_dot2_f32_bf16 v{Z+2*i+1}, v{b}, {sHi}, v{Z+2*i+1}")
        E("s_nop 2")
        for i in range(4): E(f"v_fma_f32 v{T+i}, v{T+i}, v{RS+mt}, v{Z+i}")
        E(f"v_cvt_pk_bf16_f32 v{T}, v{T}, v{T+1}\nv_cvt_pk_bf16_f32 v{T+1}, v{T+2}, v{T+3}")
        E(f"buffer_store_dwordx2 {vr(T,2)}, {vT2}, {sOUT}, {sT} offen offset:{256 + mt*1152} {O('outflav','')}")
    E("L3_no8b:")
    if stamps:
        stamp()
        E("s_waitcnt vmcnt(0)")
        stamp()
        E(f"s_lshl_b32 {sT}, s2, 2\ns_add_u32 {sT}, {sT}, {sw}\ns_lshl_b32 {sT}, {sT}, 6\ns_add_u32 {sT}, {sT}, {TS_OFF}")
        E(f"v_mov_b32 {vT0}, 0")
        for i in range(nstamp[0] + 1):
            E(f"v_mov_b32 {vT1}, s{60+2*i}\nbuffer_store_dword {vT1}, {vT0}, {sWS}, {sT} offen offset:{i*4}")
    E("L3_end:\ns_endpgm")
    for lab, need, soff, voff in slow:
        E(f"{lab}:\ns_mov_b32 {sSpin}, 0\n{lab}_l:")
        E(f"buffer_load_dword {vFlag}, {voff}, {sWS}, {soff} offen sc1\ns_waitcnt vmcnt(0)")
        E(f"v_subrev_u32 {vFlag}, s{3+need}, {vFlag}\nv_cmp_lt_u32 vcc, {4-need}, {vFlag}\ns_cbranch_vccz {lab}_ret")
        E(f"s_add_u32 {sSpin}, {sSpin}, 1\ns_cmp_lt_u32 {sSpin}, 0x40000\ns_cbranch_scc1 {lab}_l\ns_branch {lab}_ret")
    E("L3_codeend:")
    ideal = [16 * (b - a) for a, b in zip([0] + sorted(stamp_at), sorted(stamp_at) + [N])]
    txt = E.text()
    if O("xsc", None): txt = txt.replace(" sc1", " " + O("xsc", None))
    return txt, nstamp[0] + 1, ideal
```

```python
import numpy as np, os
L, D, F = 2048, 576, 4608
PASSES = [int(x) for x in os.environ.get("PASSES", "8,6,4").split(",")]
AFF0_AFTER = 2
EARLY_B = int(os.environ.get("EARLY_B", "9"))
TM_STEPS = int(os.environ.get("TM_STEPS", "9"))
SF = 16
NFRAG = 666
NSTAGE = (NFRAG + SF - 1) // SF
WP_STRIDE = NSTAGE * SF * 1024
def al(x, a=4096): return (x + a - 1) // a * a
HB_OFF = 0
WP_OFF = al(HB_OFF + 72 * 2048 * 16)
HX_OFF = al(WP_OFF + 16 * WP_STRIDE)
PP_OFF = al(HX_OFF + 256 * 72 * 1024)
P8_OFF = al(PP_OFF + 256 * 24 * 1024)
FL_OFF = al(P8_OFF + 64 * 16 * 1024)
FL_BYTES = 256 * 4 * 128
US_OFF = al(FL_OFF + FL_BYTES)
KC_STRIDE = 8320
KC_OFF = al(US_OFF + 256 * 576 * 32)
CS_OFF = al(KC_OFF + 576 * KC_STRIDE)
TS_OFF = al(CS_OFF + 18 * 4608 * 4)
WS_USED = TS_OFF + (1 << 20)

def tile0(q): return sum(PASSES[:q])
def pairs_of():
    pairs = []; t = 0
    for q in range(len(PASSES)):
        pairs.append(list(range(t // 2, (t + PASSES[q]) // 2))); t += PASSES[q]
    return pairs

def steps_list():
    st = []
    np_ = len(PASSES)
    tl = lambda q: list(range(tile0(q), tile0(q) + PASSES[q]))
    for q in range(np_):
        for ks in range(18):
            st.append(('g1', q, ks, tl(q)))
            if q == 1 and ks == AFF0_AFTER:
                st.append(('g1', 0, 18, tl(0)))
        if q >= 1:
            st.append(('g1', q, 18, tl(q)))
    pairs = pairs_of()
    ks2 = [(0, p) for p in range(9)]
    for q in range(np_):
        for p in pairs[q]:
            for j in range(1, 4): ks2.append((j, p))
    NO = [0, 1, 2, 3, 4, 5, 8]
    for i, (j, p) in enumerate(ks2[:36 - TM_STEPS]):
        st.append(('g2', j, p, NO + ([6, 7] if i < EARLY_B else [])))
    for grp in [[0, 1], [2, 3], [4, 5], [8]]:
        for (j, p) in ks2[36 - TM_STEPS:]:
            st.append(('g2', j, p, grp))
    for (j, p) in ks2[EARLY_B:]:
        st.append(('g2', j, p, [6, 7]))
    return st

def bf2f(u): return (u.astype(np.uint32) << 16).view(np.float32)
def f2bf(x):
    x = np.ascontiguousarray(x, dtype=np.float32); u = x.view(np.uint32)
    return ((u + 0x7FFF + ((u >> 16) & 1)) >> 16).astype(np.uint16)

lane = np.arange(64); li = lane & 15; lq = lane >> 4; e8 = np.arange(8)
def dcol(t, i, Fq):
    if t == 8: return 128 + i
    pr = (Fq + 1 + t // 2) & 3
    return 32 * pr + 8 * (i >> 2) + 4 * (t & 1) + (i & 3)

def pack_wp(w1, b1, w2):
    cs = bf2f(w1).reshape(3, 192, -1).sum(1, dtype=np.float32)
    hi = f2bf(cs); lo = f2bf(cs - bf2f(hi))
    out = np.zeros((16, WP_STRIDE // 2), np.uint16)
    st = steps_list()
    for Ft in range(16):
        Fq, g = Ft >> 2, Ft & 3
        fr = []
        for s in st:
            if s[0] == 'g1':
                _, q, ks, tiles = s
                for t in tiles:
                    f = 288 * Ft + 16 * t + li
                    if ks < 18:
                        d = 32 * ks + 8 * lq[:, None] + e8[None]
                        fr.append(w1[d, f[:, None]])
                    else:
                        a = np.zeros((64, 8), np.uint16)
                        a[:, 0] = b1[f]
                        for i in range(3): a[:, 2 + 2 * i] = hi[i][f]; a[:, 3 + 2 * i] = lo[i][f]
                        fr.append(a)
            else:
                _, j, p, tiles = s
                mem = (g + j) & 3
                f = 288 * (4 * Fq + mem) + 32 * p + 16 * (e8[None] >> 2) + 4 * lq[:, None] + (e8[None] & 3)
                for t in tiles:
                    d = 144 * g + dcol(t, li, Fq)
                    fr.append(w2[f, d[:, None]])
        fr = np.stack(fr)
        assert fr.shape[0] == NFRAG
        out[Ft, :NFRAG * 512] = fr.reshape(-1)
    return out

def pack_hb(h):
    return np.ascontiguousarray(h.reshape(2048, 144, 4).transpose(1, 0, 2))

def frag_tables():
    w1 = np.zeros((19, 18), np.int64); w2 = np.zeros((4, 9, 9), np.int64)
    fi = 0
    for s in steps_list():
        for t in s[3]:
            if s[0] == 'g1': w1[s[2], t] = fi
            else: w2[s[1], s[2], t] = fi
            fi += 1
    return w1, w2

H0 = list(range(9)) + [1024, 1032, 1280, 1288, 1536, 1544]
H1 = [256, 258, 260, 262, 264, 512, 516, 520, 768, 772, 776, 1792, 1800]
def krow(half, v): return 8 * (v // 4) + 4 * half + (v % 4)

def model_us(x, u):
    a = np.stack([u, x], -1).reshape(256, 8, 576, 2).transpose(0, 2, 3, 1)
    return np.ascontiguousarray(a)
def model_kc(K):
    out = np.zeros((576, KC_STRIDE // 2), np.uint16)
    R = K[:, ::-1]
    out[:, :2048] = R
    out[:, 2080 + 1: 2080 + 2049] = R
    return out

UF_OFF = KC_OFF
EP_OFF = KC_OFF + 16384
F2_OFF = KC_OFF + 131072
U2_OFF = KC_OFF + 262144
F3_OFF = KC_OFF + 49152
```

```python
import sys, json, re
from layout import *
from emit import kd
import gen_front, gen_k3
REF = "sequential_preLN__ssm_conv_s4d__dense_activation_squared_relu__prompt.s.ref"
NAME = "sequential_preLN__ssm_conv_s4d__dense_activation_squared_relu__prompt_kernel"
def gen_all(opt=None, stamps=False, final=False):
    opt = opt or {}
    b1 = gen_front.gen_front(NAME, opt)
    b3, ns, ideal = gen_k3.gen_k3(stamps=stamps, LA=opt.get("LA", 5), opt=opt)
    if opt.get("rt", 0):
        b1 = b1.replace("LF_codestart:\n", "LF_codestart:\ns_memrealtime s[100:101]\n")
        b3 = b3.replace("L3_end:\n", f"""s_waitcnt vmcnt(0)
s_memrealtime s[98:99]
s_lshl_b32 s94, s2, 2
s_add_u32 s94, s94, s20
s_lshl_b32 s94, s94, 4
s_add_u32 s94, s94, {TS_OFF + 0x40000}
v_mov_b32 v0, 0
s_waitcnt lgkmcnt(0)
v_mov_b32 v2, s100
v_mov_b32 v3, s96
v_mov_b32 v4, s98
v_mov_b32 v5, 0
buffer_store_dwordx4 v[2:5], v0, s[8:11], s94 offen sc1
L3_end:
""")
    hdr = open(REF).read().split("; Override launch")[0] if final else ""
    hdr += f"; @launch grid=(256,1,1) block=(256,1,1) lds={max(gen_front.F_LDS, gen_k3.K3_LDS)}\n"
    hdr += '.amdgcn_target "amdgcn-amd-amdhsa--gfx950"\n.text\n'
    return hdr + b1 + b3 + '.section .rodata,"a"\n' + kd(NAME, 512, 102, 256), ns
if __name__ == "__main__":
    opt = json.loads(sys.argv[2]) if len(sys.argv) > 2 else {}
    out = sys.argv[3] if len(sys.argv) > 3 else REF[:-4]
    txt, ns = gen_all(opt, final=True)
    open(out, "w").write(txt)
    print("written", out, len(txt))
```
